```python
import torch

def _softmax(x, axis=-1):
    return torch.softmax(x, dim=axis)

def _gelu(x):
    return torch.nn.functional.gelu(x, approximate='tanh')

def _silu(x):
    return torch.nn.functional.silu(x)

def _sigmoid(x):
    return torch.sigmoid(x)

def _layernorm(x, axis=-1, eps=1e-05):
    m = x.mean(dim=axis, keepdim=True)
    v = x.var(dim=axis, keepdim=True, unbiased=False)
    return (x - m) / torch.sqrt(v + eps)

def _scatter_add(tgt, idx, src, axis=0):
    return tgt.clone().index_add_(axis, idx, src)

def _segment_sum(src, seg, n):
    out = torch.zeros((n,) + src.shape[1:], dtype=src.dtype)
    return out.index_add_(0, seg, src)

def _pad(x, pw):
    flat = tuple((v for pair in reversed(pw) for v in pair))
    return torch.nn.functional.pad(x, flat)
kernel_name = 'adaLN_cond__memory_aug_recurrent_mem_tr__glu_gated_swiglu__prompt'

def setup_inputs():

    _w = lambda a: (lambda t: t.to(torch.bfloat16) if t.is_floating_point() else t)(torch.as_tensor(a))

    def _A_setup():
        B, S, Dm = (1, 2048, 1024)
        H, Dh = (32, 128)
        M, seg = (8, 32)
        seg = min(seg, S)
        S = S // seg * seg
        return {'x': _w((lambda *s: torch.randn(*s, dtype=torch.bfloat16) * 0.05)(B, S, Dm)), 'mem0': _w((lambda *s: torch.randn(*s, dtype=torch.bfloat16) * 0.8)(B, M, Dm)), 'Wq': _w((lambda *s: torch.randn(*s, dtype=torch.bfloat16) * 0.8)(Dm, H, Dh) * Dm ** (-0.5)), 'Wk': _w((lambda *s: torch.randn(*s, dtype=torch.bfloat16) * 0.8)(Dm, H, Dh) * Dm ** (-0.5)), 'Wv': _w((lambda *s: torch.randn(*s, dtype=torch.bfloat16) * 0.8)(Dm, H, Dh) * Dm ** (-0.5)), 'Wo': _w((lambda *s: torch.randn(*s, dtype=torch.bfloat16) * 0.8)(H, Dh, Dm) * (H * Dh) ** (-0.5)), 'seg_len': seg}
    _A_in = _A_setup()

    def _B_setup():
        B, S, D, F = (1, 2048, 1024, 3584)
        return {'x': _w((lambda *s: torch.randn(*s, dtype=torch.bfloat16) * 0.05)(B, S, D)), 'w1': _w((lambda *s: torch.randn(*s, dtype=torch.bfloat16) * 0.4)(D, F) * (2.0 / D) ** 0.5), 'w3': _w((lambda *s: torch.randn(*s, dtype=torch.bfloat16) * 0.4)(D, F) * (2.0 / D) ** 0.5), 'w2': _w((lambda *s: torch.randn(*s, dtype=torch.bfloat16) * 0.4)(F, D) * (2.0 / F) ** 0.5)}
    _B_in = _B_setup()
    return {'A_x': _A_in['x'], 'A_mem0': _A_in['mem0'], 'A_Wq': _A_in['Wq'], 'A_Wk': _A_in['Wk'], 'A_Wv': _A_in['Wv'], 'A_Wo': _A_in['Wo'], 'A_seg_len': _A_in['seg_len'], 'B_x': _B_in['x'], 'B_w1': _B_in['w1'], 'B_w3': _B_in['w3'], 'B_w2': _B_in['w2'], 'c': _w((lambda *s: torch.randn(*s, dtype=torch.bfloat16) * 0.1)(1, 1024) * 8.0), 'w_mod': _w((lambda *s: torch.randn(*s, dtype=torch.bfloat16) * 0.1)(1024, 6 * 1024) * 1024 ** (-0.5) * 8.0)}

def reference(A_x, A_mem0, A_Wq, A_Wk, A_Wv, A_Wo, A_seg_len, B_x, B_w1, B_w3, B_w2, c, w_mod):

    def _A_ref(x, mem0, Wq, Wk, Wv, Wo, seg_len):
        B, S, Dm = x.shape
        H, Dh = (Wq.shape[1], Wq.shape[2])
        M = mem0.shape[1]
        scale = Dh ** (-0.5)
        n_seg = S // seg_len
        L = M + seg_len
        idx = torch.arange(L)
        mask = (idx[:, None] < M) | (idx[:, None] >= idx[None, :])
        mem = mem0
        outs = []
        for s in range(n_seg):
            xs = x[:, s * seg_len:(s + 1) * seg_len, :].clone()
            h = torch.concatenate([mem, xs], axis=1)
            q = torch.einsum('btd,dhe->bhte', h, Wq)
            k = torch.einsum('btd,dhe->bhte', h, Wk)
            v = torch.einsum('btd,dhe->bhte', h, Wv)
            scores = torch.einsum('bhqe,bhke->bhqk', q, k) * scale
            scores = torch.where(mask[None, None], scores, -1000000000.0)
            p = _softmax(scores, axis=-1)
            o = torch.einsum('bhqk,bhke->bhqe', p, v)
            o = torch.einsum('bhte,hed->btd', o, Wo)
            mem = o[:, :M, :].clone()
            outs.append(o[:, M:, :])
        return torch.concatenate(outs, axis=1)

    def _B_ref(x, w1, w3, w2):
        gate = torch.einsum('bsd,df->bsf', x, w1)
        up = torch.einsum('bsd,df->bsf', x, w3)
        h = _silu(gate) * up
        out = torch.einsum('bsf,fd->bsd', h, w2)
        return out
    x = A_x
    mod = (_silu(c) @ w_mod).reshape(c.shape[0], 6, 1, -1)
    sa, ca, ga, sb, cb, gb = (mod[:, 0].clone(), mod[:, 1].clone(), mod[:, 2].clone(), mod[:, 3].clone(), mod[:, 4].clone(), mod[:, 5].clone())
    h = _layernorm(x, axis=-1) * (1 + ca) + sa
    x = x + ga * _A_ref(h, A_mem0, A_Wq, A_Wk, A_Wv, A_Wo, A_seg_len)
    h = _layernorm(x, axis=-1) * (1 + cb) + sb
    x = x + gb * _B_ref(h, B_w1, B_w3, B_w2)
    return x
```

```python
import struct, os, numpy as np
from run_asm import *
def gen(name, send, poll, other):
    snd = {"plain": "v_mov_b32 v8, s30\n  buffer_store_dword v8, v2, s[8:11], s22 offen",
           "sc1": "v_mov_b32 v8, s30\n  buffer_store_dword v8, v2, s[8:11], s22 offen sc1",
           "satomic": "s_mov_b32 s40, 1\n  s_atomic_add s40, s[6:7], s22 glc"}[send]
    if poll == "s":
        pl = f"""P_{name}:
  s_load_dword s41, s[6:7], s23 glc
  s_sub_u32 s31, s31, 1
  s_cbranch_scc1 FIN_{name}
  s_waitcnt lgkmcnt(0)
  s_cmp_ge_i32 s41, s30
  s_cbranch_scc0 P_{name}
"""
    else:
        pl = f"""P_{name}:
  buffer_load_dword v9, v2, s[8:11], s23 offen sc1
  s_sub_u32 s31, s31, 1
  s_cbranch_scc1 FIN_{name}
  s_waitcnt vmcnt(0)
  v_cmp_gt_i32 vcc, s30, v9
  s_cbranch_vccnz P_{name}
"""
    return head(name) + f"""
  s_load_dwordx4 s[4:7], s[0:1], 0
  s_mov_b32 s21, 0
  s_cmp_eq_u32 s2, 0
  s_cbranch_scc1 GO_{name}
  s_mov_b32 s21, 1
  s_cmp_eq_u32 s2, {other}
  s_cbranch_scc0 END_{name}
GO_{name}:
  s_waitcnt lgkmcnt(0)
  s_mov_b32 s8, s6
  s_mov_b32 s9, s7
  s_mov_b32 s10, {1 << 20}
  s_mov_b32 s11, 0x20000
  s_lshl_b32 s22, s21, 8
  s_xor_b32 s23, s22, 256
  v_mov_b32 v2, 0
  s_mov_b64 exec, 1
  s_mov_b32 s30, 1
  s_mov_b32 s31, 20000
  s_memtime s[34:35]
  s_waitcnt lgkmcnt(0)
  s_cmp_eq_u32 s21, 0
  s_cbranch_scc1 SEND_{name}
{pl}  s_sub_u32 s24, 1, s21
  s_add_u32 s30, s30, s24
SEND_{name}:
  {snd}
  s_add_u32 s30, s30, s21
  s_cmp_lt_u32 s30, 101
  s_cbranch_scc1 P_{name}
FIN_{name}:
  s_waitcnt lgkmcnt(0)
  s_memtime s[36:37]
  s_waitcnt lgkmcnt(0)
  s_sub_u32 s36, s36, s34
  v_mov_b32 v12, s36
  v_mov_b32 v13, s31
  s_lshl_b32 s21, s21, 3
  v_mov_b32 v14, s21
  global_store_dwordx2 v14, v[12:13], s[4:5]
  s_waitcnt vmcnt(0)
END_{name}:
  s_endpgm
""" + kd(name, 64, 64)
import sys
cfg = [("plain", "v", 8), ("plain", "s", 8), ("sc1", "v", 2), ("sc1", "s", 2), ("sc1", "s", 8)]
if "atomic" in sys.argv: cfg += [("satomic", "v", 8), ("satomic", "s", 8), ("satomic", "v", 2), ("satomic", "s", 2)]
names = [f"s_{a}_{b}_{c}" for a, b, c in cfg]
co = assemble('.amdgcn_target "amdgcn-amd-amdhsa--gfx950"\n' + "".join(gen(n, *c) for n, c in zip(names, cfg)), names, 16, out="smempp")
if not os.path.exists('/dev/kfd'): raise SystemExit
m = Module(co)
out = DeviceBuffer(64); ws = DeviceBuffer(1 << 20)
for n in names:
    memset(ws); memset(out); sync()
    m.launch(n, 16, 64, struct.pack("<QQ", out.ptr, ws.ptr), lds=100000); sync()
    r = out.to_numpy(np.int32, (4,))
    print(n, "one-way clk %.0f" % (r[0] / 200), "polls used", 20000 - r[1], 20000 - r[3], "clk/poll %.0f" % (r[0] / max(1, 20000 - r[1])))
```

```python
import re

_REG = re.compile(r"\b([vas])(\d+)\b|\b([vas])\[(\d+):(\d+)\]")
TRANS = ("v_exp_f32", "v_log_f32", "v_rcp_f32", "v_rsq_f32", "v_sqrt_f32", "v_sin_f32", "v_cos_f32")


def regs_of(op):
    out = set()
    for m in _REG.finditer(op):
        if m.group(1):
            out.add((m.group(1), int(m.group(2))))
        else:
            out.update((m.group(3), i) for i in range(int(m.group(4)), int(m.group(5)) + 1))
    if re.search(r"\bvcc\b", op): out.update({("s", "vcc")})
    if re.search(r"\bm0\b", op): out.add(("s", "m0"))
    return out


def split_ops(rest):
    ops, depth, cur = [], 0, ""
    for ch in rest:
        if ch == "[": depth += 1
        if ch == "]": depth -= 1
        if ch == "," and depth == 0:
            ops.append(cur.strip()); cur = ""
        else:
            cur += ch
    if cur.strip(): ops.append(cur.strip())
    return ops


class Ins:
    def __init__(self, text):
        self.text = text
        t = text.split(";")[0].strip()
        self.mn, _, rest = t.partition(" ")
        mn = self.mn
        ops = split_ops(rest)
        self.states = 1
        self.kind = "other"
        self.w, self.r = set(), set()
        self.c = set()
        self.data = set()
        allr = lambda l: set().union(*[regs_of(o) for o in l]) if l else set()
        if mn == "s_nop":
            self.states = int(ops[0]) + 1
        elif mn.startswith("v_mfma"):
            self.kind = "mfma"; self.w = regs_of(ops[0]); self.r = allr(ops[1:3]); self.c = regs_of(ops[3])
        elif mn.startswith("v_smfmac"):
            self.kind = "mfma"; self.w = regs_of(ops[0]); self.r = allr(ops[1:4]); self.c = set(self.w)
        elif mn.startswith("v_"):
            self.kind = "valu"
            self.w = regs_of(ops[0]); self.r = allr(ops[1:])
            if mn.startswith("v_permlane") and "swap" in mn:
                self.w = allr(ops[:2]); self.r = set(self.w)
            if mn.startswith(("v_fmac", "v_dot2c")) or "dpp" in mn:
                self.r |= self.w
        elif mn.startswith(("buffer_", "global_")):
            self.kind = "vmem"
            if "load" in mn and not re.search(r"\blds\b", rest):
                self.w = regs_of(ops[0]); self.r = allr(ops[1:])
            else:
                self.r = allr(ops)
                if re.search(r"\blds\b", rest): self.r.add(("s", "m0"))
                if "store" in mn and ("x4" in mn or "x3" in mn):
                    self.data = regs_of(ops[0] if mn.startswith("buffer_") else ops[1])
        elif mn.startswith("ds_"):
            self.kind = "ds"
            if mn.startswith("ds_read") or "rtn" in mn or "permute" in mn or "swizzle" in mn:
                self.w = regs_of(ops[0]); self.r = allr(ops[1:])
            else:
                self.r = allr(ops)
        elif mn.startswith("s_"):
            self.kind = "salu"
            if mn.startswith(("s_cmp", "s_bitcmp", "s_cbranch", "s_branch", "s_waitcnt", "s_barrier", "s_sleep", "s_setprio", "s_endpgm")):
                self.r = allr(ops)
            else:
                self.w = regs_of(ops[0]); self.r = allr(ops[1:])
        self.passes = 8 if "32x32" in mn else 4
        self.trans = mn.replace("_e32", "").replace("_e64", "") in TRANS
        self.dpp = "dpp" in mn or "row_" in rest or "quad_perm" in rest
        self.perm = mn.startswith("v_permlane")
        self.rdlane = mn.startswith(("v_readfirstlane", "v_readlane"))


def need(p, c):
    n = 0
    vg = lambda s: {x for x in s if x[0] != "s"}
    sg = lambda s: {x for x in s if x[0] == "s"}
    if p.kind == "valu":
        pv, ps = vg(p.w), sg(p.w)
        if c.kind == "mfma" and pv & (c.r | c.c): n = max(n, 2)
        if c.kind == "valu":
            if pv & c.r:
                if c.dpp or c.perm: n = max(n, 2)
                if c.rdlane: n = max(n, 1)
                if p.trans: n = max(n, 1)
            if ps & c.r: n = max(n, 4 if c.rdlane else 2)
        if c.kind == "vmem" and ps & c.r: n = max(n, 5)
    if p.kind == "mfma":
        big = {4: 8, 8: 12}[p.passes]
        if c.kind == "mfma":
            if p.w & c.r: n = max(n, big)
            if p.w & c.c and not (p.w == c.c and p.mn == c.mn): n = max(n, big - 2)
            if p.w & c.w and not p.w & c.c: n = max(n, big)
        elif c.kind in ("valu", "vmem", "ds"):
            if p.w & (c.r | c.w): n = max(n, big)
            if p.c & c.w: n = max(n, p.passes - 1)
    if p.kind == "salu" and ("s", "m0") in p.w and c.kind == "vmem" and ("s", "m0") in c.r: n = max(n, 1)
    if p.data and p.data & c.w: n = max(n, 2)
    return n


class Asm:
    def __init__(self):
        self.lines = []
        self.hist = []
        self.nops = 0

    def raw(self, text):
        self.lines.append(text)

    def _push(self, ins):
        self.lines.append("  " + ins.text)
        self.hist.append(ins)
        if len(self.hist) > 24: self.hist.pop(0)

    def __call__(self, text):
        for line in text.strip().split("\n"):
            line = line.strip()
            if line.startswith(";@"):
                self.lines.append(line); continue
            if not line or line.startswith(";"):
                continue
            if line.endswith(":"):
                self.lines.append(line); continue
            ins = Ins(line)
            dist, pad = 0, 0
            for p in reversed(self.hist):
                pad = max(pad, need(p, ins) - dist)
                dist += p.states
                if dist >= 12: break
            if pad > 0:
                self._push(Ins(f"s_nop {pad - 1}")); self.nops += pad
            self._push(ins)
            if ins.mn in ("s_branch", "s_endpgm"):
                self.hist = []

    def flush(self):
        dist, pad = 0, 0
        for p in reversed(self.hist):
            worst = 0
            if p.kind == "mfma": worst = {4: 8, 8: 12}[p.passes]
            elif p.kind == "valu": worst = 5 if any(x[0] == "s" for x in p.w) else 2
            elif p.data: worst = 2
            elif p.kind == "salu" and ("s", "m0") in p.w: worst = 1
            pad = max(pad, worst - dist)
            dist += p.states
            if dist >= 12: break
        if pad > 0:
            self._push(Ins(f"s_nop {pad - 1}"))

    def text(self):
        return "\n".join(self.lines) + "\n"


class Regs:
    def __init__(self, prefix, start, end):
        self.p, self.free = prefix, set(range(start, end))

    def get(self, cnt=1, align=1):
        for r in sorted(self.free):
            if r % align == 0 and all(r + k in self.free for k in range(cnt)):
                self.free -= set(range(r, r + cnt))
                return r
        raise AssertionError(f"out of {self.p} registers")


def R(p, i, n=1):
    return f"{p}{i}" if n == 1 else f"{p}[{i}:{i + n - 1}]"
```

```python
from asm import Asm, Regs, R

NAME = "adaLN_cond__memory_aug_recurrent_mem_tr__glu_gated_swiglu__prompt"
NSEG = 64
LAYOUTS = {
    0: ("RRRR", "Q Wi Wm Li", "RRRR", "Q Wi Wm Ni", "Q Q Fw Fw", "Q Fw Fw Dm", "Q Q Fw Fw", "Q Fw Dw Dm"),
    1: ("RRRR", "Wi Wi Wm Li", "RRRR", "Wi Dm Dm Nm", "Q Q Fw Fw", "Q Q Fw Fw", "Q Q Fw Fw", "Q Q Fw Dw"),
    2: ("RRRR", "Fm Fm Fm Lm", "RRRR", "Di Di Di Ni", "Q Q Q Q", "Ww Ww Ww Ww", "Q Q Q Q", "Fw Fw Fw Fw"),
    4: ("RRRR", "Ww Ww Fw Lw", "RRRR", "Ww Ww Fw Nw", "Q Q Fm Di", "Q Q Fm Di", "Q Q Fm Di", "Q Q Fm Fi"),
    5: ("RRRR", "Wi Wi Fm Lm", "RRRR", "Wi Wi Fm Nm", "Q Q Q Q", "Fw Fw Dw Dw", "Q Q Q Q", "Fw Fw Fw Dw"),
    6: ("RRRR", "Ww Ww Fw Lw", "RRRR", "Wi Wi Fi Ni", "Q Q Q Fm", "Q Q Q Fm", "Q Q Fm Dm", "Fw Fw Dw Dw"),
    7: ("RRRR", "Q Q Q Q", "RRRR", "Q Q Q Q", "Ww Ww Ww Ww", "Fw Fw Fw Fw", "Fm Fm Fm Lm", "Di Di Di Ni"),
    8: ("RRRR", "Q Q Wi Wi", "RRRR", "Q Q Wi Wi", "Q Q Q Q", "Fw Fw Fw Fw", "Fm Fm Fm Lm", "Dw Dw Dw Nw"),
    9: ("RRRR", "Q Q Q Q", "RRRR", "Wi Wi Wi Wi", "Q Q Q Q", "Fw Fw Fw Fw", "Fm Fm Fm Lm", "Dw Dw Dw Nw"),
    3: ("RRRR", "Q Wi Wi Lm", "RRRR", "Q Wi Wi Nm", "Q Q Fw Fw", "Q Fw Fw Dm", "Q Q Fw Fw", "Q Fw Dw Dm"),
}


def layout(k):
    free = {"Q": [4, 5, 6, 7, 12, 13, 14, 15], "W": [16, 17, 18, 19], "F": list(range(20, 27)), "L": [27], "D": [28, 29, 30],
            "N": [31], "w": list(range(16, 24)), "m": [24, 25, 26, 27], "i": [28, 29, 30, 31]}
    role, job = [], []
    for x, row in enumerate(LAYOUTS[k]):
        if row == "RRRR":
            role.append([4 * x + o for o in range(4)]); job.append(role[-1]); continue
        role.append([free[e[0]].pop(0) for e in row.split()])
        job.append([free[e[1]].pop(0) if len(e) > 1 else r for e, r in zip(row.split(), role[-1])])
    assert not any(free.values())
    return role, job


K_X, K_MEM0, K_WQ, K_WK, K_WV, K_WO, K_W1, K_W3, K_W2, K_C, K_WMOD, K_OUT, K_DBG, K_WS = (
    0, 8, 16, 24, 32, 40, 64, 72, 80, 88, 96, 104, 112, 120)

CH = 0x8000
O_RING = 0x000000
MEM_RING = 0x100000
TRIG = MEM_RING + 8 * CH
PROBE = MEM_RING + 9 * CH
LOCX = 0x2000
FLG = 0x150000
FL_MOD = FLG
FL_LN1 = FL_MOD + 96 * 128
FL_QKV = FL_LN1 + 64 * 128
FL_QK = FL_QKV + 64 * 128
FL_WO = FL_QK + 32 * 128
FL_LN2 = FL_WO + 32 * 128
FL_F1 = FL_LN2 + 8 * 128
FL_F2 = FL_F1 + 56 * 128
FL_TAB = FL_F2 + 24 * 128
FL_WOF = FL_TAB + 64 * 128
assert FL_WOF + 64 * 128 <= 0x180000
MOD = 0x180000
H1 = 0x200000
WOF = 0x600000
TOK = 0x1000000
TSEG, THEAD, TPART = 1 << 21, 1 << 16, 1 << 14
PWO = 0
PF2 = 32 * TPART
H2 = 56 * TPART
X1 = 64 * TPART
ACT = 72 * TPART
TRACE = 0x9000000
TIMES = 0x9400000
WS_SIZE = 0x9408000

OOB = 0x7FFFFF00
LDS_BYTES = 163840
BUDGET = 300000

WS, WW, DBG, XS = "s[4:7]", "s[8:11]", "s[12:15]", "s[16:19]"
S_WAVE, S_IDX, S_X, S_R, S_TMO, S_SEG = "s20", "s21", "s22", "s23", "s24", "s25"
LANE = "v0"
DBG_SEL, DBG_INIT = 16 * 4, 32 * 4


class Gen(Asm):
    def __init__(self, opt):
        super().__init__()
        self.opt = opt
        self.uid = 0

    def lab(self, base):
        self.uid += 1
        return f"L{base}_{self.uid}"

    def phase(self, key):
        if key not in self.opt: return
        l = self.lab("ph")
        self.flush()
        self(f"s_branch {l}")
        self.raw(".p2align 6")
        self.raw(f".fill {self.opt[key]}, 4, 0xbf800000")
        self(f"{l}:")

    def srd(self, which, karg, size):
        b = int(which[2:which.index(":")])
        self(f"""
        s_load_dwordx2 s[{b}:{b + 1}], s[0:1], {karg}
        s_mov_b32 s{b + 2}, {size}
        s_mov_b32 s{b + 3}, 0x20000
        s_waitcnt lgkmcnt(0)
        """)

    def budget(self):
        self(f"""
        s_sub_u32 {S_TMO}, {S_TMO}, 1
        s_cbranch_scc1 L_FAIL
        """)

    def poll(self, vaddr, thr, vt, srd=WS, soff="0", sleep=2):
        top, done = self.lab("poll"), self.lab("polld")
        self.flush()
        self(f"""
        {top}:
        buffer_load_dword {vt}, {vaddr}, {srd}, {soff} offen sc1
        """)
        self.budget()
        self(f"""
        s_waitcnt vmcnt(0)
        v_cmp_gt_i32 vcc, {thr}, {vt}
        s_cbranch_vccz {done}
        s_sleep {sleep}
        s_branch {top}
        {done}:
        """)

    def signal(self, soff, val, wave=None):
        skip = self.lab("nosig")
        if wave is not None: self(f"s_cmp_lg_u32 {S_WAVE}, {wave}\ns_cbranch_scc1 {skip}")
        self(f"s_mov_b32 s63, {val}\ns_atomic_smax s63, s[4:5], {soff} glc\n{skip}:")

    def flag_addr(self, vdst, base, n, sfirst=None, pitch=7):
        self(f"v_min_u32 {vdst}, {n - 1}, {LANE}")
        if sfirst is not None:
            self(f"v_add_u32 {vdst}, {sfirst}, {vdst}")
        self(f"""
        v_lshlrev_b32 {vdst}, {pitch}, {vdst}
        v_add_u32 {vdst}, {base}, {vdst}
        """)

    def lane0_addr(self, vdst, sval):
        self(f"""
        v_mov_b32 {vdst}, {OOB}
        s_mov_b64 exec, 1
        v_mov_b32 {vdst}, {sval}
        s_mov_b64 exec, -1
        """)

    def scalar_init_wait(self):
        top = self.lab("ini")
        self(f"{top}:\ns_load_dwordx16 s[64:79], s[12:13], {DBG_INIT} glc\ns_load_dwordx16 s[80:95], s[12:13], {DBG_INIT + 64} glc")
        self.budget()
        self("s_waitcnt lgkmcnt(0)")
        for k in range(66, 96, 2): self(f"s_and_b64 s[64:65], s[64:65], s[{k}:{k + 1}]")
        self(f"s_and_b32 s64, s64, s65\ns_cbranch_scc0 {top}")

    def pick_sel(self, sdst, t1, t2, show=None):
        self(f"v_lshrrev_b32 {t1}, 8, {t1}\nv_and_b32 {t2}, 3, {LANE}\nv_lshl_or_b32 {t1}, {t1}, 2, {t2}")
        for sh in (8, 4):
            self(f"v_min_u32_dpp {t1}, {t1}, {t1} row_ror:{sh} row_mask:0xf bank_mask:0xf")
        for op in ("v_permlane16_swap_b32", "v_permlane32_swap_b32"):
            self(f"v_mov_b32 {t2}, {t1}\n{op} {t2}, {t1}\nv_min_u32 {t1}, {t1}, {t2}")
        if show: show()
        for sh in (2, 1):
            self(f"v_min_u32_dpp {t1}, {t1}, {t1} row_ror:{sh} row_mask:0xf bank_mask:0xf")
        self(f"v_readfirstlane_b32 {sdst}, {t1}\ns_and_b32 {sdst}, {sdst}, 3\ns_lshl_b32 {sdst}, {sdst}, 13")
        if self.opt.get("sel") is not None:
            self(f"s_mov_b32 {sdst}, {self.opt['sel'] << 13}")

    def page_base(self, sdst, t0, far):
        self.flag_addr(f"v{t0}", FL_TAB, 64)
        self.poll(f"v{t0}", "0", f"v{t0 + 1}", sleep=1)
        self.pick_sel(sdst, f"v{t0 + 1}", f"v{t0 + 2}")
        self(f"s_and_b32 {sdst}, {sdst}, 0x2000\ns_xor_b32 {sdst}, {sdst}, {TOK + (far ^ self.opt.get('far', 0)) * 0x2000}")

    def next_page(self, s):
        return f"s_add_u32 {s}, {s}, {TSEG}\ns_xor_b32 {s}, {s}, 0x2000"

    def tlb_warm(self, v1, v2):
        if not self.opt.get("tlb", 1): return
        skip = self.lab("notlb")
        self(f"""
        s_cmp_lg_u32 {S_WAVE}, 2
        s_cbranch_scc1 {skip}
        v_lshlrev_b32 {v1}, 21, {LANE}
        s_mov_b32 s40, 0x1fff80
        buffer_load_dword {v2}, {v1}, {WS}, s40 offen
        s_add_u32 s40, s40, {64 << 21}
        buffer_load_dword {v2}, {v1}, {WS}, s40 offen
        s_waitcnt vmcnt(0)
        {skip}:
        """)

    def wait_init(self, v1, v2):
        self.flag_addr(v1, DBG_INIT, 32, pitch=2)
        self.poll(v1, "1", v2, srd=DBG)

    def trace_setup(self, v):
        self.vtrace = v
        if not self.opt.get("trace"): return
        self(f"""
        s_lshl_b32 s40, s3, 2
        s_add_u32 s40, s40, {S_WAVE}
        s_lshl_b32 s40, s40, 12
        s_add_u32 s40, s40, {TRACE}
        """)
        self.lane0_addr(v, "s40")

    def stamp(self, k):
        if self.opt.get("trace"):
            self(f"s_memtime s[{64 + 2 * k}:{65 + 2 * k}]")

    def trace_flush(self, vt, drain=True, back=0):
        if not self.opt.get("trace"): return
        self("s_memtime s[84:85]\ns_memrealtime s[86:87]\ns_waitcnt lgkmcnt(0)")
        self(f"s_sub_u32 s40, {S_SEG}, {back}\ns_lshl_b32 s40, s40, 6")
        for q in range(3):
            for k in range(4):
                self(f"v_mov_b32 v{vt + k}, s{64 + 2 * (4 * q + k)}")
            self(f"buffer_store_dwordx4 v[{vt}:{vt + 3}], {self.vtrace}, {WS}, s40 offen offset:{16 * q}")
        if drain: self("s_waitcnt vmcnt(0)")

    def dbg_time(self, slot, v1, v2):
        if not self.opt.get("times"): return
        self(f"""
        s_memrealtime s[40:41]
        v_mov_b32 {v1}, s3
        v_lshlrev_b32 {v1}, 7, {v1}
        v_add_u32 {v1}, {TIMES + slot * 4}, {v1}
        s_waitcnt lgkmcnt(0)
        v_mov_b32 {v2}, s40
        s_mov_b64 exec, 1
        buffer_store_dword {v2}, {v1}, {WS}, 0 offen
        s_mov_b64 exec, -1
        """)

    def wave_sum(self, regs, tmps):
        for sh in (8, 4, 2, 1):
            for v in regs:
                self(f"v_add_f32_dpp v{v}, v{v}, v{v} row_ror:{sh} row_mask:0xf bank_mask:0xf")
        for op in ("v_permlane16_swap_b32", "v_permlane32_swap_b32"):
            for v, t in zip(regs, tmps): self(f"v_mov_b32 v{t}, v{v}")
            for v, t in zip(regs, tmps): self(f"{op} v{t}, v{v}")
            for v, t in zip(regs, tmps): self(f"v_add_f32 v{v}, v{v}, v{t}")

    def group_max(self, regs, tmps):
        for op in ("v_permlane16_swap_b32", "v_permlane32_swap_b32"):
            for v, t in zip(regs, tmps): self(f"v_mov_b32 v{t}, v{v}")
            for v, t in zip(regs, tmps): self(f"{op} v{t}, v{v}")
            for v, t in zip(regs, tmps): self(f"v_max_f32 v{v}, v{v}, v{t}")

    def src_lane(self, vdst, vt, rs, g0, r1=2, r0=1):
        self(f"""
        v_bfe_u32 {vdst}, {LANE}, 5, 1
        v_mul_u32_u24 {vdst}, {g0 * rs}, {vdst}
        v_bfe_u32 {vt}, {LANE}, 4, 1
        v_mul_u32_u24 {vt}, {r1 * rs}, {vt}
        v_add_u32 {vdst}, {vdst}, {vt}
        v_bfe_u32 {vt}, {LANE}, 3, 1
        v_mul_u32_u24 {vt}, {r0 * rs}, {vt}
        v_add_u32 {vdst}, {vdst}, {vt}
        v_lshrrev_b32 {vt}, 3, {LANE}
        v_and_b32 {vt}, 6, {vt}
        v_xor_b32 {vt}, {vt}, {LANE}
        """)
        self(f"v_and_b32 {vt}, 7, {vt}\nv_lshl_add_u32 {vdst}, {vt}, 4, {vdst}")

    def tr_lane(self, vdst, vt, sslot):
        self(f"""
        v_bfe_u32 {vt}, {LANE}, 3, 2
        v_xor_b32 {vt}, {sslot}, {vt}
        v_lshlrev_b32 {vt}, 5, {vt}
        v_lshrrev_b32 {vdst}, 2, {LANE}
        v_lshl_add_u32 {vdst}, {vdst}, 7, {vt}
        v_and_b32 {vt}, 3, {LANE}
        v_lshl_add_u32 {vdst}, {vt}, 3, {vdst}
        """)

    def dense_loader(self, items, vtr0, vtr1, depth=7, pol=" nt", chores={}):
        self(f"s_lshl_b32 s41, {S_WAVE}, 10")
        chunks = [items[i:i + 4] for i in range(0, len(items), 4)]

        def issue(c):
            for k, (setup, vsrc, off, _) in enumerate(chunks[c]):
                if setup: setup()
                slot = (4 * c + k) % 32
                self(f"""
                s_add_u32 m0, s41, {slot * 4096}
                s_mov_b32 s42, {off}
                buffer_load_dwordx4 {vsrc}, {WW}, s42 offen{pol} lds
                """)
        for c in range(min(depth, len(chunks))): issue(c)
        for c in range(len(chunks)):
            newer = sum(len(chunks[k]) for k in range(c + 1, min(c + depth, len(chunks))))
            self(f"s_waitcnt vmcnt({newer}) lgkmcnt(0)\ns_barrier")
            if c + depth < len(chunks): issue(c + depth)
            for k, (_, _, _, dst) in enumerate(chunks[c]):
                slot = (4 * c + k) % 32
                for p in range(2):
                    self(f"ds_read_b64_tr_b16 {dst(p)}, {vtr0 if slot < 16 else vtr1} offset:{(slot % 16) * 4096 + p * 2048}")
            if c in chores: chores[c]()
        self("s_waitcnt lgkmcnt(0)\ns_barrier")


def wreg(i, n):
    return R("a", i, n) if i < 256 else R("v", i - 128, n)
```

```python
from common import *

S_BUF, S_SRC, S_PREF, S_THR, S_FOFF, S_OUT, S_W4, S_W3 = "s26", "s27", "s28", "s29", "s30", "s31", "s32", "s33"
LOG2E = 1.4426950408889634


def fbits(x):
    import struct
    return hex(struct.unpack("<I", struct.pack("<f", x))[0])


class GStage:
    nks = 32
    gstride = 2 * TPART
    nst = 2
    kind = "row"
    orient = ("W", "W")
    flag_next = f"s_add_u32 {S_THR}, {S_THR}, 1"

    def __init__(self, g):
        self.g = g
        self.v = Regs("v", 1, 128)

    def wr(self, t, ks, n=4, p=0):
        return wreg((t * self.nks + ks) * 4 + 2 * p, n)

    def load_rounds(self, rounds, rs, a_of, P, G1, G0):
        g = self.g
        v = Regs("v", self.xr, self.xr + 32)
        vl, vt, tr0, tr1 = (f"v{v.get()}" for _ in range(4))
        g.src_lane(vl, vt, rs, G0)
        g(f"""
        s_lshr_b32 s40, {S_WAVE}, 1
        s_mul_i32 s40, s40, {P * rs}
        s_and_b32 s41, {S_WAVE}, 1
        s_mul_i32 s41, s41, {G1 * rs}
        s_add_u32 s40, s40, s41
        v_add_u32 {vl}, s40, {vl}
        """)
        g.tr_lane(tr0, vt, S_WAVE)
        g(f"v_add_u32 {tr1}, 0x10000, {tr0}")
        items = []
        for t, (setup, scol) in enumerate(rounds):
            vs = f"v{v.get()}"
            g(f"v_add_u32 {vs}, {scol}, {vl}")
            for ks in range(self.nks):
                items.append((setup if ks == 0 else None, vs, a_of(ks) * rs,
                              (lambda p, t=t, ks=ks: self.wr(t, ks, 2, p))))
        if g.opt.get("ilv", 1) and rounds[1][0] is None:
            n = self.nks
            items = [items[t * n + ks] for ks in range(n) for t in range(2)] + items[2 * n:]
        g.dense_loader(items, tr0, tr1, pol="" if self.name == "QKV" and g.opt.get("polg", 0) == 0 else " nt", chores=self.chores(),
                       depth=7 if self.name == "QKV" else g.opt.get("depth", 7))

    def chores(self):
        return {}

    def run_addr(self, sdst, srun):
        self.g(f"""
        s_lshr_b32 s40, {srun}, 1
        s_lshl_b32 s40, s40, 14
        s_and_b32 s41, {srun}, 1
        s_lshl_b32 s41, s41, 12
        s_add_u32 {sdst}, s40, s41
        """)

    def dma_list(self):
        out = []
        if self.kind == "row":
            for u in range(self.nks // 2):
                out.append([f"s_add_u32 m0, s34, {u * 4096 - u * 128}",
                            f"buffer_load_dwordx4 {self.vdma}, {WS}, s35 offen offset:{u * 128} sc1 lds"])
        else:
            for grp in range((self.nks + 7) // 8):
                short = 8 * grp + 8 > self.nks
                pre = [f"s_add_u32 s36, {S_W3 if short else S_W4}, {grp * 16384}", "s_add_u32 m0, s34, s36",
                       f"s_add_u32 s36, s35, {grp * self.gstride}"] + (["s_add_u32 s36, s36, s39"] if short else [])
                for k in range(4):
                    out.append((pre if k == 0 else []) + [f"buffer_load_dwordx4 {self.vdma}, {WS}, s36 offen offset:{k * 1024} sc1 lds"])
        return out

    def xread(self, ks, rt):
        dst = R("v", self.xr + (ks % 4) * 8 + rt * 4, 4)
        if self.kind == "row":
            return f"ds_read_b128 {dst}, {self.vrd[ks & 1]} offset:{(ks >> 1) * 4096 + rt * 2048}"
        off = (2 * ks + rt) * 1024
        return f"ds_read_b128 {dst}, {self.vrd[off >> 16]} offset:{off & 0xffff}"

    def mfma(self, ks, t, rt):
        acc = R("v", self.acc + (t * 2 + rt) * 4, 4)
        x = R("v", self.xr + (ks % 4) * 8 + rt * 4, 4)
        a, b = (self.wr(t, ks), x) if self.orient[t] == "W" else (x, self.wr(t, ks))
        if self.g.opt.get("nomfma") and ks: return "s_nop 3"
        return f"v_mfma_f32_16x16x32_bf16 {acc}, {a}, {b}, {'0' if ks == 0 else acc}"

    def ksteps(self, lo, hi, extra, hooks):
        g, nt = self.g, len(self.orient)
        extra = list(extra)
        per = -(-len(extra) // max(1, hi - lo - 1))
        for ks in range(lo, hi):
            if ks in hooks: hooks[ks]()
            g(f"s_waitcnt lgkmcnt({2 * min(2, self.nks - 1 - ks)})")
            fill = [[self.xread(ks + 3, rt)] for rt in range(2)] if ks + 3 < self.nks else []
            for _ in range(per):
                if extra: fill.append(extra.pop(0))
            for t in range(nt):
                for rt in range(2):
                    g(self.mfma(ks, t, rt))
                    if fill: g("\n".join(fill.pop(0)))
            for f in fill: g("\n".join(f))
        assert not extra

    def prologue(self):
        g, v, nm = self.g, self.v, self.name
        nt = len(self.orient)
        self.xr = v.get(32, 4)
        self.acc = v.get(8 * nt, 4)
        self.tmp = v.get(16, 4)
        self.vdma, self.vfl, self.vft, self.vout, vl0, vl1, vd, vtrc = (f"v{v.get()}" for _ in range(8))
        self.vrd = [f"v{v.get()}", f"v{v.get()}"]
        t0, t1 = f"v{self.tmp}", f"v{self.tmp + 1}"
        g(f"L_{nm}:")
        if self.kind == "row":
            g(f"""
            v_lshrrev_b32 {t0}, 3, {LANE}
            v_and_b32 {t1}, 6, {t0}
            v_xor_b32 {t1}, {t1}, {LANE}
            v_and_b32 {t1}, 7, {t1}
            v_lshlrev_b32 {t1}, 4, {t1}
            v_lshl_add_u32 {self.vdma}, {t0}, 11, {t1}
            s_lshl_b32 s40, {S_WAVE}, 14
            v_add_u32 {self.vdma}, s40, {self.vdma}
            s_lshl_b32 {S_W4}, {S_WAVE}, 10
            v_and_b32 {t0}, 6, {LANE}
            v_lshrrev_b32 {t1}, 4, {LANE}
            v_xor_b32 {t0}, {t0}, {t1}
            v_lshlrev_b32 {t0}, 4, {t0}
            v_and_b32 {t1}, 15, {LANE}
            v_lshl_add_u32 {vl0}, {t1}, 7, {t0}
            v_xor_b32 {vl1}, 64, {vl0}
            """)
        else:
            g(f"""
            v_lshlrev_b32 {self.vdma}, 4, {LANE}
            s_lshl_b32 {S_W4}, {S_WAVE}, 12
            s_min_u32 {S_W3}, {S_W4}, 0x2000
            v_mov_b32 {vl0}, {self.vdma}
            v_add_u32 {vl1}, 0x10000, {vl0}
            """)
            if nm == "F1": self.quad_major(self.vdma)
        self.weights()
        g.dbg_time(self.dbg_slot, t0, t1)
        self.setup()
        g.trace_setup(vtrc)
        return vl0, vl1, vd

    def emit(self):
        g, nm = self.g, self.name
        BUF = self.nks * 2048
        DONE = 2 * BUF
        vl0, vl1, vd = self.prologue()
        g(f"""
        v_lshlrev_b32 {vd}, 2, {LANE}
        v_add_u32 {vd}, {DONE}, {vd}
        s_mov_b32 {S_SEG}, 0
        s_mov_b32 {S_BUF}, 0
        s_mov_b32 {S_THR}, 1
        s_mov_b32 {S_FOFF}, 0
        s_mov_b32 {S_PREF}, 0
        """)
        if g.opt.get("hold") == nm: g.poll(self.vfl, "64", self.vft, sleep=8)
        g(f"""
        L_{nm}_top:
        s_cmp_eq_u32 {S_PREF}, 1
        s_cbranch_scc1 L_{nm}_go
        s_cmp_eq_u32 {S_PREF}, 2
        s_cbranch_scc1 L_{nm}_mid
        s_cmp_lg_u32 {S_WAVE}, 0
        s_cbranch_scc1 L_{nm}_park
        buffer_load_dword {self.vft}, {self.vfl}, {WS}, {S_FOFF} offen sc1
        s_waitcnt vmcnt(1)
        s_barrier
        """)
        g.signal("s62", S_SEG)
        g(f"s_cmp_ge_u32 {S_SEG}, {NSEG}\ns_cbranch_scc1 L_END")
        g.stamp(0)
        g(f"""
        s_waitcnt vmcnt(0)
        v_cmp_gt_i32 vcc, {S_THR}, {self.vft}
        s_cbranch_vccz L_{nm}_issue
        """)
        g.poll(self.vfl, S_THR, self.vft, soff=S_FOFF, sleep=g.opt.get("gsleep", 1))
        g(f"""
        s_branch L_{nm}_issue
        L_{nm}_park:
        s_waitcnt vmcnt(0)
        s_barrier
        s_cmp_ge_u32 {S_SEG}, {NSEG}
        s_cbranch_scc1 L_END
        """)
        g.stamp(0)
        g(f"L_{nm}_issue:\ns_barrier\nL_{nm}_mid:")
        own = f"s_add_u32 s34, {S_BUF}, {S_W4}" if self.kind == "row" else f"s_mov_b32 s34, {S_BUF}"
        g(f"{own}\ns_mov_b32 s35, {S_SRC}")
        dmas = self.dma_list()
        N = g.opt.get("n0", 12)
        dmas, rest = dmas[:N], dmas[N:]
        for d in dmas: g("\n".join(d) + ("\ns_nop 0" if g.opt.get("rr", 1) else ""))
        g(f"s_cmp_eq_u32 {S_PREF}, 0\ns_cbranch_scc1 L_{nm}_go\ns_mov_b32 {S_PREF}, 0\ns_waitcnt vmcnt({N})\ns_barrier")
        g.signal("s62", S_SEG, 0)
        g(f"L_{nm}_go:")
        g.stamp(1)
        g(f"""
        v_add_u32 {self.vrd[0]}, {S_BUF}, {vl0}
        v_add_u32 {self.vrd[1]}, {S_BUF}, {vl1}
        s_sub_u32 {S_BUF}, {BUF}, {S_BUF}
        {g.next_page(S_SRC)}
        """)
        g(self.flag_next)
        g(f"s_waitcnt vmcnt({N - 4})\ns_barrier")
        for ks in range(3):
            for rt in range(2): g(self.xread(ks, rt))
        ask = f"""s_lshl_b32 s40, {S_WAVE}, 8
        s_add_u32 m0, s40, {DONE}
        s_cmp_eq_u32 {S_WAVE}, 0
        s_cselect_b32 s40, {S_FOFF}, {OOB}
        buffer_load_dword {self.vfl}, {WS}, s40 offen sc1 lds"""
        self.ksteps(0, 5, rest, {})
        g(f"s_waitcnt vmcnt({N - 8 + len(rest)})\ns_barrier\n{own}\ns_mov_b32 s35, {S_SRC}")
        self.ksteps(5, 13, [], {g.opt.get("pq1", 12): lambda: g(ask)})
        blk3 = N + len(rest) - 12
        late = g.opt.get("b3", 19)

        def report():
            g(f"s_lshl_b32 s40, {S_WAVE}, 1\ns_add_u32 s40, s40, 1\ns_cmp_lg_u32 s40, {S_PREF}\ns_cbranch_scc1 L_{nm}_s2")
            g.signal("s62", S_SEG)
            g(f"L_{nm}_s2:")
        if late > 13:
            if g.opt.get("psig", 1):
                g(f"s_waitcnt vmcnt({blk3 + 1})\ns_barrier")
                report()
            else:
                g(f"""
                s_waitcnt vmcnt({blk3 + 1 + self.nst})
                s_cmp_lg_u32 {S_PREF}, 0
                s_cbranch_scc1 L_{nm}_b2
                s_waitcnt vmcnt({blk3 + 1})
                L_{nm}_b2:
                s_barrier
                """)
            self.ksteps(13, late, [], {})
        g(f"""
        s_waitcnt vmcnt(0)
        s_barrier
        ds_read_b32 {self.vft}, {vd}
        """)
        if not g.opt.get("psig", 1): report()
        self.ksteps(late, late + 2, [], {})
        late += 2
        g(f"""
        s_waitcnt lgkmcnt(4)
        v_cmp_gt_i32 vcc, {S_THR}, {self.vft}
        s_mov_b32 {S_PREF}, 0
        s_cbranch_vccnz L_{nm}_nopf
        s_cmp_ge_u32 {S_SEG}, {NSEG - 1}
        s_cbranch_scc1 L_{nm}_nopf
        s_mov_b32 {S_PREF}, 1
        """)
        hist = list(g.hist)
        self.ksteps(late, self.nks, dmas, {})
        g.flush()
        g(f"s_branch L_{nm}_epi\nL_{nm}_nopf:")
        g.hist = hist
        if g.opt.get("mid", 1):
            k1, k2 = max(late + 1, self.nks - g.opt.get("mq", 8)), self.nks - 2
            self.ksteps(late, k1, [], {})
            g("s_barrier\n" + ask)
            self.ksteps(k1, k2, [], {})
            g(f"s_waitcnt vmcnt(0)\ns_barrier\nds_read_b32 {self.vft}, {vd}")
            self.ksteps(k2, self.nks, [], {})
            g(f"""
            v_cmp_gt_i32 vcc, {S_THR}, {self.vft}
            s_cmp_eq_u64 vcc, 0
            s_cselect_b32 {S_PREF}, 2, 0
            s_cmp_lt_u32 {S_SEG}, {NSEG - 1}
            s_cselect_b32 {S_PREF}, {S_PREF}, 0
            """)
        else:
            self.ksteps(late, self.nks, [], {})
        g(f"L_{nm}_epi:")
        g.stamp(2)
        self.epilogue()
        g.stamp(3)
        g.trace_flush(self.tmp + 12, drain=False)
        g(f"""
        s_add_u32 {S_SEG}, {S_SEG}, 1
        {g.next_page(S_OUT)}
        """)
        g.flush()
        g(f"s_branch L_{nm}_top")

    def quad_major(self, vdst):
        t0 = f"v{self.tmp}"
        self.g(f"""
        v_and_b32 {vdst}, 3, {LANE}
        v_lshlrev_b32 {vdst}, 4, {vdst}
        v_lshrrev_b32 {t0}, 4, {LANE}
        v_lshl_add_u32 {vdst}, {t0}, 6, {vdst}
        v_bfe_u32 {t0}, {LANE}, 2, 2
        v_lshl_add_u32 {vdst}, {t0}, 8, {vdst}
        """)

    def sig_addr(self, base):
        self.g(f"s_lshl_b32 s62, {S_IDX}, 7\ns_add_u32 s62, s62, {base}")

    def a(self, t, rt, r=0):
        return self.acc + (t * 2 + rt) * 4 + r


A_H = lambda ks: 512 * (ks >> 4) + 16 * (ks & 15)
A_O = lambda ks: 128 * (ks >> 2) + 16 * (ks & 3)


class QKV(GStage):
    name, orient, dbg_slot, nst = "QKV", ("W", "W", "X"), 3, 3
    flag_next = f"s_add_u32 {S_FOFF}, {S_FOFF}, 128"
    src_step = 65536

    def chores(self):
        def init():
            self.g(f"s_cmp_lg_u32 {S_WAVE}, 0\ns_cbranch_scc1 L_QKV_noinit")
            self.g.scalar_init_wait()
            self.g("L_QKV_noinit:")
        return {10: init}

    def weights(self):
        g = self.g
        g(f"""
        s_and_b32 s43, {S_IDX}, 1
        s_lshr_b32 s44, {S_IDX}, 1
        s_lshl_b32 s44, s44, 8
        s_add_u32 s45, s44, 128
        s_lshl_b32 s46, s43, 7
        s_add_u32 s46, s46, s44
        s_load_dwordx4 s[48:51], s[0:1], {K_WQ}
        s_waitcnt lgkmcnt(0)
        s_cmp_eq_u32 s43, 0
        s_cselect_b32 s8, s48, s50
        s_cselect_b32 s9, s49, s51
        s_mov_b32 s10, {8 << 20}
        s_mov_b32 s11, 0x20000
        """)
        self.load_rounds([(None, "s44"), (None, "s45"), (lambda: g.srd(WW, K_WV, 8 << 20), "s46")], 8192, A_H, 256, 8, 4)

    def setup(self):
        g = self.g
        g(f"""
        s_lshr_b32 s62, {S_IDX}, 1
        s_lshl_b32 s62, s62, 7
        s_and_b32 s40, {S_IDX}, 1
        s_lshl_b32 s40, s40, 2
        s_add_u32 s62, s62, s40
        s_add_u32 s62, s62, {FL_QKV}
        """)
        self.vout2 = f"v{self.v.get()}"
        g(f"""
        s_mov_b32 {S_SRC}, {H1}
        s_lshr_b32 s40, {S_IDX}, 1
        s_mul_i32 {S_OUT}, s40, {THEAD}
        s_and_b32 s41, {S_IDX}, 1
        s_lshl_b32 s42, {S_WAVE}, 11
        s_lshl_b32 s40, s41, 14
        s_add_u32 s40, s40, s42
        v_lshl_add_u32 {self.vout}, {LANE}, 4, s40
        s_lshl_b32 s40, s41, 10
        s_add_u32 s40, s40, s42
        s_add_u32 s40, s40, {2 * TPART}
        v_lshl_add_u32 {self.vout2}, {LANE}, 4, s40
        """)

    def emit(self):
        g, t = self.g, None
        vl0, vl1, _ = self.prologue()
        t = self.tmp
        order = [(0, 0), (1, 0), (0, 1), (1, 1), (2, 0), (2, 1)]
        dst = lambda tt, rt: t + 4 * rt + 2 * tt if tt < 2 else t + 8 + 2 * rt
        cvt = lambda tt, rt: [f"v_cvt_pk_bf16_f32 v{dst(tt, rt) + h}, v{self.a(tt, rt, 2 * h)}, v{self.a(tt, rt, 2 * h + 1)}" for h in range(2)]
        stores = [f"buffer_store_dwordx4 {R('v', t + 4 * rt, 4)}, {self.vout}, {WS}, s37 offen offset:{rt * 1024} sc1" for rt in range(2)]
        stores.append(f"buffer_store_dwordx4 {R('v', t + 8, 4)}, {self.vout2}, {WS}, s37 offen sc1")
        dmas = self.dma_list()

        g(f"""
        v_lshrrev_b32 {self.vfl}, 3, {LANE}
        v_lshlrev_b32 {self.vfl}, 7, {self.vfl}
        v_and_b32 {self.vft}, 7, {LANE}
        v_lshl_add_u32 {self.vfl}, {self.vft}, 2, {self.vfl}
        v_add_u32 {self.vfl}, {FL_LN1}, {self.vfl}
        s_mov_b32 {S_SEG}, 0
        s_mov_b32 s37, {OOB}
        s_mov_b32 {S_FOFF}, 0
        s_mov_b32 s34, {S_W4}
        s_mov_b32 s35, {S_SRC}
        v_mov_b32 {self.vrd[0]}, {vl0}
        v_mov_b32 {self.vrd[1]}, {vl1}
        """)
        g.poll(self.vfl, "1", self.vft, sleep=1)
        for d in dmas: g("\n".join(d))
        g.page_base("s40", t, 0)
        g(f"s_add_u32 {S_OUT}, {S_OUT}, s40\ns_barrier")
        g.dbg_time(18, f"v{t}", f"v{t + 1}")
        for ks in range(3):
            for rt in range(2): g(self.xread(ks, rt))
        lead = g.opt.get("lead", 0)
        vqa, vqt = f"v{self.v.get()}", f"v{self.v.get()}"
        g(f"s_lshr_b32 s40, {S_IDX}, 1\ns_lshl_b32 s40, s40, 7\ns_add_u32 s40, s40, {FL_QK}\nv_mov_b32 {vqa}, s40\nv_mov_b32 {vqt}, -1")
        g(f"L_QKV_top:")
        g.stamp(1)
        first, sig, last = 3, g.opt.get("qsig", 12), 29
        for ks in range(32):
            fill = [[self.xread((ks + 3) % 32, rt)] for rt in range(2)]
            if ks == first:
                g(f"""
                s_xor_b32 s34, s34, 0x10000
                s_add_u32 s35, s35, 65536
                s_cbranch_vccz L_QKV_have
                """)
                g.poll(self.vfl, "1", self.vft, soff=S_FOFF, sleep=1)
                g("L_QKV_have:")
                if lead:
                    g(f"s_sub_u32 s40, {S_SEG}, {lead}\nv_cmp_gt_i32 vcc, s40, {vqt}\ns_cbranch_vccz L_QKV_near")
                    g.poll(vqa, "s40", vqt, sleep=4)
                    g("L_QKV_near:")
                g("s_barrier")
            if ks == sig:
                g(f"s_waitcnt vmcnt({sig - first})\ns_barrier")
                g.signal("s62", S_SEG, 0)
            if ks == last:
                g(f"""
                s_waitcnt vmcnt(0)
                s_barrier
                v_xor_b32 {self.vrd[0]}, 0x10000, {self.vrd[0]}
                v_xor_b32 {self.vrd[1]}, 0x10000, {self.vrd[1]}
                """)
            if first <= ks < first + 16: fill.append(dmas[ks - first])
            if ks in (1, 2): fill += [[x] for x in stores[2 * ks - 2:2 * ks]]
            if ks == 2: fill.append([f"v_cmp_gt_i32 vcc, 1, {self.vft}"])
            if ks == 22 and lead: fill.append([f"buffer_load_dword {vqt}, {vqa}, {WS}, 0 offen sc1"])
            if ks == 20:
                fill.append([f"s_add_u32 {S_FOFF}, {S_SEG}, 2", f"s_and_b32 {S_FOFF}, {S_FOFF}, 56", f"s_lshl_b32 {S_FOFF}, {S_FOFF}, 7",
                             f"buffer_load_dword {self.vft}, {self.vfl}, {WS}, {S_FOFF} offen sc1"])
            g("s_waitcnt lgkmcnt(4)")
            for i, (tt, rt) in enumerate(order):
                if ks == 0: g("\n".join(cvt(tt, rt)))
                g(self.mfma(ks, tt, rt))
                if fill and (ks or i >= 4): g("\n".join(fill.pop(0)))
            assert not fill
        g.stamp(2); g.stamp(3)
        g.trace_flush(t + 12, drain=False)
        g(f"""
        s_mov_b32 s37, {S_OUT}
        s_add_u32 {S_OUT}, {S_OUT}, {TSEG}
        s_xor_b32 {S_OUT}, {S_OUT}, 0x2000
        s_add_u32 {S_SEG}, {S_SEG}, 1
        s_cmp_lt_u32 {S_SEG}, {NSEG}
        s_cbranch_scc1 L_QKV_top
        """)
        for tt, rt in order: g("\n".join(cvt(tt, rt)))
        g("\n".join(stores) + "\ns_waitcnt vmcnt(0) lgkmcnt(0)\ns_barrier")
        g.signal("s62", S_SEG, 0)
        g("s_branch L_END")


class PartialOut(GStage):
    kind = "frag"

    def out_setup(self, base):
        self.g(f"""
        s_lshl_b32 s40, {S_IDX}, 14
        s_add_u32 s40, s40, s38
        s_add_u32 {S_OUT}, s40, {base}
        s_lshl_b32 s40, {S_WAVE}, 11
        """)
        self.quad_major(self.vout)
        self.g(f"v_add_u32 {self.vout}, s40, {self.vout}")

    def epilogue(self):
        g, t = self.g, self.tmp
        for rt in range(2):
            for tt in range(2):
                for h in range(2):
                    g(f"v_cvt_pk_bf16_f32 v{t + 4 * rt + 2 * tt + h}, v{self.a(tt, rt, 2 * h)}, v{self.a(tt, rt, 2 * h + 1)}")
            g(f"buffer_store_dwordx4 {R('v', t + 4 * rt, 4)}, {self.vout}, {WS}, {S_OUT} offen offset:{rt * 1024} sc1")

    def col_rounds(self, krows):
        self.g(f"""
        s_lshr_b32 s44, {S_IDX}, 3
        s_mul_i32 s44, s44, {krows * 2048}
        s_and_b32 s45, {S_IDX}, 7
        s_lshl_b32 s45, s45, 8
        s_add_u32 s44, s44, s45
        s_add_u32 s45, s44, 128
        """)
        return [(None, "s44"), (None, "s45")]


class WO(PartialOut):
    name, dbg_slot = "WO", 4
    gstride = 2 * THEAD

    def weights(self):
        self.g.srd(WW, K_WO, 8 << 20)
        self.load_rounds(self.col_rounds(1024), 2048, A_O, 64, 8, 4)

    def setup(self):
        g = self.g
        g(f"s_and_b32 s43, {S_IDX}, 24")
        g.flag_addr(self.vfl, FL_QK, 8, "s43")
        self.sig_addr(FL_WO)
        g.page_base("s38", self.tmp, 1)
        g(f"""
        s_xor_b32 {S_SRC}, s38, 0x2000
        s_lshr_b32 s40, {S_WAVE}, 1
        s_add_u32 s40, s40, s43
        s_mul_i32 s40, s40, {THEAD}
        s_and_b32 s41, {S_WAVE}, 1
        s_lshl_b32 s41, s41, 12
        s_add_u32 s40, s40, s41
        s_add_u32 s40, s40, {3 * TPART}
        s_add_u32 {S_SRC}, {S_SRC}, s40
        """)
        self.out_setup(PWO)


class F2(PartialOut):
    name, nks, dbg_slot = "F2", 38, 6

    def weights(self):
        g = self.g
        g.srd(WW, K_W2, 3584 * 2048)
        rounds = self.col_rounds(38 * 32)
        g(f"s_cmp_ge_u32 {S_IDX}, 16\ns_cselect_b32 s40, {64 * 2048}, 0\ns_sub_u32 s44, s44, s40\ns_sub_u32 s45, s45, s40")
        self.load_rounds(rounds, 2048, lambda ks: 32 * ks, 8, 16, 4)
        g(f"s_cmp_lt_u32 {S_IDX}, 16\ns_cbranch_scc1 L_F2_keep")
        for t in range(2):
            for k in range(8):
                g(f"v_accvgpr_write_b32 a{t * 38 * 4 + k}, 0")
        g.flush()
        g("L_F2_keep:")

    def setup(self):
        g = self.g
        g.page_base("s38", self.tmp, 1)
        g(f"s_lshr_b32 s43, {S_IDX}, 3\ns_mul_i32 s43, s43, 19\ns_min_u32 s43, s43, 37")
        g.flag_addr(self.vfl, FL_F1, 19, "s43")
        g(f"s_add_u32 s44, s43, {S_WAVE}\ns_min_u32 s45, {S_WAVE}, 2\ns_add_u32 s45, s45, s43")
        self.run_addr(S_SRC, "s44")
        self.run_addr("s39", "s45")
        g(f"s_sub_u32 s39, s39, {S_SRC}\ns_add_u32 {S_SRC}, {S_SRC}, s38\ns_add_u32 {S_SRC}, {S_SRC}, {ACT}")
        self.sig_addr(FL_F2)
        self.out_setup(PF2)


class F1(GStage):
    name, dbg_slot, kind, nst = "F1", 5, "frag", 1

    def weights(self):
        g = self.g
        g.srd(WW, K_W1, 1024 * 7168)
        g(f"s_lshl_b32 s44, {S_IDX}, 7")
        self.load_rounds([(None, "s44"), (lambda: g.srd(WW, K_W3, 1024 * 7168), "s44")], 7168, A_O, 64, 8, 4)

    def setup(self):
        g, t0 = self.g, f"v{self.tmp}"
        g.flag_addr(self.vfl, FL_LN2, 8)
        self.sig_addr(FL_F1)
        g.page_base("s38", self.tmp, 1)
        self.run_addr(S_SRC, S_WAVE)
        self.run_addr(S_OUT, S_IDX)
        g(f"""
        s_add_u32 {S_SRC}, {S_SRC}, s38
        s_add_u32 {S_SRC}, {S_SRC}, {H2}
        s_add_u32 {S_OUT}, {S_OUT}, s38
        s_add_u32 {S_OUT}, {S_OUT}, {ACT}
        s_lshr_b32 s40, {S_WAVE}, 1
        s_lshl_b32 s40, s40, 11
        s_and_b32 s41, {S_WAVE}, 1
        s_lshl_b32 s41, s41, 9
        s_add_u32 s40, s40, s41
        v_and_b32 {t0}, 31, {LANE}
        v_lshl_add_u32 {self.vout}, {t0}, 4, s40
        v_lshrrev_b32 {t0}, 5, {LANE}
        v_lshl_add_u32 {self.vout}, {t0}, 10, {self.vout}
        s_mov_b32 s37, {fbits(-LOG2E)}
        """)

    def epilogue(self):
        g, t = self.g, self.tmp
        idx = [(rt, r) for rt in range(2) for r in range(4)]
        for i, (rt, r) in enumerate(idx): g(f"v_mul_f32 v{t + i}, s37, v{self.a(0, rt, r)}")
        for i in range(8): g(f"v_exp_f32 v{t + i}, v{t + i}")
        for rt in range(2):
            for h in range(2):
                a, b = self.a(0, rt, 2 * h), self.a(1, rt, 2 * h)
                g(f"v_pk_mul_f32 {R('v', a, 2)}, {R('v', a, 2)}, {R('v', b, 2)}")
        for i in range(8): g(f"v_add_f32 v{t + i}, 1.0, v{t + i}")
        for i in range(8): g(f"v_rcp_f32 v{t + i}, v{t + i}")
        for rt in range(2):
            for h in range(2):
                a = self.a(0, rt, 2 * h)
                g(f"v_pk_mul_f32 {R('v', a, 2)}, {R('v', a, 2)}, {R('v', t + 4 * rt + 2 * h, 2)}")
        for rt in range(2):
            for h in range(2):
                g(f"v_cvt_pk_bf16_f32 v{t + 8 + 2 * rt + h}, v{self.a(0, rt, 2 * h)}, v{self.a(0, rt, 2 * h + 1)}")
        g(f"""
        v_permlane32_swap_b32 v{t + 8}, v{t + 10}
        v_permlane32_swap_b32 v{t + 9}, v{t + 11}
        buffer_store_dwordx4 {R('v', t + 8, 4)}, {self.vout}, {WS}, {S_OUT} offen sc1
        """)
```

```python
from common import *
from gstage import fbits, LOG2E

P2 = lambda r: R("v", r, 2)
P4 = lambda r: R("v", r, 4)


def emit_init(g):
    g(f"""
    L_INIT:
    s_lshl_b32 s40, {S_R}, 2
    s_add_u32 s40, s40, {S_WAVE}
    s_lshl_b32 s40, s40, 12
    s_add_u32 s41, s40, {MEM_RING}
    s_add_u32 s42, s40, 0x80000
    v_lshlrev_b32 v1, 4, {LANE}
    v_mov_b32 v4, -1
    v_mov_b32 v5, -1
    v_mov_b32 v6, -1
    v_mov_b32 v7, -1
    """)
    g(f"s_cmp_lt_u32 {S_R}, 4\ns_cselect_b32 s41, {OOB}, s41")
    for s in ("s41", "s40", "s42"):
        for k in range(4):
            g(f"buffer_store_dwordx4 v[4:7], v1, {WS}, {s} offen offset:{k * 1024} sc1")
    g.srd(XS, K_MEM0, 16384)
    g(f"""
    s_and_b32 s40, {S_WAVE}, 1
    s_lshl_b32 s40, s40, 3
    v_bfe_u32 v8, {LANE}, 2, 3
    v_add_u32 v8, s40, v8
    s_lshr_b32 s40, {S_WAVE}, 1
    s_lshl_b32 s40, s40, 3
    v_and_b32 v9, 3, {LANE}
    v_add_u32 v9, s40, v9
    v_bfe_u32 v10, v8, 1, 1
    v_lshl_add_u32 v9, v10, 2, v9
    v_lshrrev_b32 v10, 2, v8
    v_and_b32 v11, 1, v8
    v_lshl_add_u32 v10, v10, 1, v11
    s_lshl_b32 s40, {S_R}, 6
    v_lshl_add_u32 v10, v10, 11, s40
    v_lshl_add_u32 v10, v9, 1, v10
    buffer_load_ushort v11, v10, {XS}, 0 offen
    buffer_load_ushort v12, v10, {XS}, 0 offen offset:32
    s_bfe_u32 s41, {S_R}, 0x10002
    s_mul_i32 s41, s41, {CH}
    s_lshr_b32 s40, {S_R}, 3
    s_lshl_b32 s40, s40, 11
    s_add_u32 s40, s40, s41
    s_and_b32 s41, {S_R}, 3
    s_lshl_b32 s41, s41, 9
    s_add_u32 s40, s40, s41
    s_lshl_b32 s41, {S_WAVE}, 7
    s_add_u32 s40, s40, s41
    s_add_u32 s40, s40, {MEM_RING}
    s_add_u32 s41, s40, 0x4000
    v_and_b32 v8, 31, {LANE}
    v_lshlrev_b32 v8, 2, v8
    v_lshrrev_b32 v9, 5, {LANE}
    v_lshl_add_u32 v8, v9, 13, v8
    s_waitcnt vmcnt(0)
    v_lshl_or_b32 v11, v12, 16, v11
    v_min_u32 v11, -2, v11
    buffer_store_dword v11, v8, {WS}, s40 offen sc1
    buffer_store_dword v11, v8, {WS}, s41 offen sc1
    """)
    g(f"s_lshl_b32 s40, {S_R}, 2\ns_add_u32 s40, s40, {DBG_INIT}\ns_cmp_eq_u32 {S_WAVE}, 0\ns_cselect_b32 s40, s40, {OOB}")
    g.lane0_addr("v2", "s40")
    g(f"""
    v_mov_b32 v3, 1
    s_waitcnt vmcnt(0)
    s_barrier
    buffer_store_dword v3, v2, {DBG}, 0 offen sc1
    """)
    g("s_branch L_LN1")


def emit_mod(g):
    g("L_MOD:")
    g.srd(XS, K_C, 2048)
    g.srd(WW, K_WMOD, 1024 * 12288)
    rs = 12288
    g(f"""
    s_lshl_b32 s40, {S_WAVE}, 9
    v_lshl_add_u32 v1, {LANE}, 3, s40
    buffer_load_dwordx2 v[8:9], v1, {XS}, 0 offen
    """)
    g.src_lane("v2", "v3", rs, 8)
    g(f"""
    s_lshr_b32 s40, {S_WAVE}, 1
    s_mul_i32 s40, s40, {4 * rs}
    s_and_b32 s41, {S_WAVE}, 1
    s_mul_i32 s41, s41, {16 * rs}
    s_add_u32 s40, s40, s41
    s_lshl_b32 s41, {S_IDX}, 7
    s_add_u32 s40, s40, s41
    v_add_u32 v2, s40, v2
    s_lshl_b32 s41, {S_WAVE}, 10
    """)
    for ks in range(32):
        g(f"""
        s_add_u32 m0, s41, {ks * 4096}
        s_mov_b32 s42, {ks * 32 * rs}
        buffer_load_dwordx4 v2, {WW}, s42 offen nt lds
        """)
    g.tr_lane("v4", "v3", S_WAVE)
    g(f"""
    v_add_u32 v5, 0x10000, v4
    v_lshrrev_b32 v6, 4, {LANE}
    v_lshlrev_b32 v6, 4, v6
    v_add_u32 v6, 0x20000, v6
    v_add_u32 v1, 0x20000, v1
    s_mov_b32 s37, {fbits(-LOG2E)}
    s_waitcnt vmcnt(32)
    v_lshlrev_b32 v10, 16, v8
    v_and_b32 v11, 0xffff0000, v8
    v_lshlrev_b32 v12, 16, v9
    v_and_b32 v13, 0xffff0000, v9
    """)
    for i in range(4): g(f"v_mul_f32 v{14 + i}, s37, v{10 + i}")
    for i in range(4): g(f"v_exp_f32 v{14 + i}, v{14 + i}")
    for i in range(4): g(f"v_add_f32 v{14 + i}, 1.0, v{14 + i}")
    for i in range(4): g(f"v_rcp_f32 v{14 + i}, v{14 + i}")
    for i in range(4): g(f"v_mul_f32 v{10 + i}, v{10 + i}, v{14 + i}")
    g("""
    v_cvt_pk_bf16_f32 v8, v10, v11
    v_cvt_pk_bf16_f32 v9, v12, v13
    ds_write_b64 v1, v[8:9]
    """)
    for blk in range(8):
        g(f"s_waitcnt vmcnt({28 - 4 * blk}) lgkmcnt(0)\ns_barrier")
        for k in range(4):
            ks = 4 * blk + k
            for p in range(2):
                g(f"ds_read_b64_tr_b16 {P2(24 + 8 * k + 2 * p)}, {'v4' if ks < 16 else 'v5'} offset:{(ks % 16) * 4096 + p * 2048}")
            g(f"ds_read_b128 {P4(28 + 8 * k)}, v6 offset:{ks * 64}")
        for k in range(4):
            g(f"s_waitcnt lgkmcnt({9 - 3 * k})")
            g(f"v_mfma_f32_16x16x32_bf16 v[20:23], {P4(24 + 8 * k)}, {P4(28 + 8 * k)}, {'0' if blk + k == 0 else 'v[20:23]'}")
    g(f"""
    s_lshl_b32 s40, {S_IDX}, 8
    s_lshl_b32 s41, {S_WAVE}, 6
    s_add_u32 s40, s40, s41
    s_add_u32 s40, s40, {MOD}
    v_and_b32 v2, 15, {LANE}
    v_cmp_eq_u32 vcc, 0, v2
    v_mov_b32 v3, {OOB}
    v_cndmask_b32 v1, v3, {LANE}, vcc
    v_cvt_pk_bf16_f32 v8, v20, v21
    v_cvt_pk_bf16_f32 v9, v22, v23
    v_lshlrev_b32 v20, 16, v8
    v_and_b32 v21, 0xffff0000, v8
    v_lshlrev_b32 v22, 16, v9
    v_and_b32 v23, 0xffff0000, v9
    buffer_store_dwordx4 v[20:23], v1, {WS}, s40 offen sc1
    """)
    g.wait_init("v2", "v3")
    g(f"s_lshl_b32 s40, {S_IDX}, 7\ns_add_u32 s40, s40, {FL_MOD}")
    g.lane0_addr("v2", "s40")
    g(f"""
    v_mov_b32 v3, 1
    s_barrier
    s_cmp_lg_u32 {S_WAVE}, 0
    s_cbranch_scc1 L_MOD_done
    buffer_store_dword v3, v2, {WS}, 0 offen sc1
    L_MOD_done:
    s_cmp_lg_u32 {S_X}, 6
    s_cbranch_scc1 L_ROLE
    """)


def load_mod(g, dst, part, v16, plus1=False):
    g(f"s_mov_b32 s40, {MOD + part * 4096}")
    for q in range(4):
        g(f"buffer_load_dwordx4 {P4(dst + 4 * q)}, {v16}, {WS}, s40 offen offset:{q * 1024} sc1")
    if plus1:
        g("s_waitcnt vmcnt(0)")
        for i in range(16): g(f"v_add_f32 v{dst + i}, 1.0, v{dst + i}")


def unpack(g, dst, src, n):
    for i in range(n):
        g(f"v_lshlrev_b32 v{dst + 2 * i}, 16, v{src + i}")
        g(f"v_and_b32 v{dst + 2 * i + 1}, 0xffff0000, v{src + i}")


def pack(g, dst, src, n):
    for i in range(n):
        g(f"v_cvt_pk_bf16_f32 v{dst + i}, v{src + 2 * i}, v{src + 2 * i + 1}")


def ln_normalize(g, rows, st):
    S = [st + 4 * i for i in range(len(rows))]
    for x, s in zip(rows, S): g(f"v_pk_add_f32 {P2(s)}, {P2(x)}, {P2(x + 2)}")
    for k in range(2, 8):
        for x, s in zip(rows, S): g(f"v_pk_add_f32 {P2(s)}, {P2(s)}, {P2(x + 2 * k)}")
    for s in S: g(f"v_add_f32 v{s}, v{s}, v{s + 1}")
    g.wave_sum(S, [s + 1 for s in S])
    for s in S: g(f"v_mul_f32 v{s}, {fbits(-1 / 1024)}, v{s}")
    for k in range(8):
        for x, s in zip(rows, S): g(f"v_pk_add_f32 {P2(x + 2 * k)}, {P2(x + 2 * k)}, {P2(s)} op_sel_hi:[1,0]")
    for x, s in zip(rows, S): g(f"v_pk_mul_f32 {P2(s)}, {P2(x)}, {P2(x)}")
    for k in range(1, 8):
        for x, s in zip(rows, S): g(f"v_pk_fma_f32 {P2(s)}, {P2(x + 2 * k)}, {P2(x + 2 * k)}, {P2(s)}")
    for s in S: g(f"v_add_f32 v{s}, v{s}, v{s + 1}")
    g.wave_sum(S, [s + 1 for s in S])
    for s in S: g(f"v_mul_f32 v{s}, {fbits(1 / 1024)}, v{s}")
    for s in S: g(f"v_add_f32 v{s}, {fbits(1e-5)}, v{s}")
    for s in S: g(f"v_rsq_f32 v{s}, v{s}")
    for k in range(8):
        for x, s in zip(rows, S): g(f"v_pk_mul_f32 {P2(x + 2 * k)}, {P2(x + 2 * k)}, {P2(s)} op_sel_hi:[1,0]")


def emit_ln1(g):
    g("L_LN1:")
    g.dbg_time(20, "v1", "v2")
    g.srd(XS, K_X, 4 << 20)
    raw, rows, st, c1, sa = 8, [40, 56, 72, 88], 104, 120, 136
    g(f"""
    s_sub_u32 s43, 7, {S_X}
    s_lshl_b32 s43, s43, 5
    s_add_u32 s43, s43, {S_R}
    s_lshl_b32 s43, s43, 2
    s_add_u32 s43, s43, {S_WAVE}
    s_lshl_b32 s44, s43, 13
    s_add_u32 s45, s44, 4096
    v_lshlrev_b32 v1, 3, {LANE}
    v_lshlrev_b32 v2, 4, {LANE}
    """)
    for i in range(4):
        for q in range(4):
            g(f"buffer_load_dwordx2 {P2(raw + 8 * i + 2 * q)}, v1, {XS}, {'s44' if i < 2 else 's45'} offen offset:{(i & 1) * 2048 + q * 512}{' nt' if g.opt.get('xnt', 1) else ''}")
    g("s_waitcnt vmcnt(0)")
    for i in range(4): unpack(g, rows[i], raw + 8 * i, 8)
    ln_normalize(g, rows, st)
    g.dbg_time(21, "v3", "v4")
    g.wait_init("v3", "v4")
    g.flag_addr("v3", FL_MOD, 32)
    g.poll("v3", "1", "v4")
    g.dbg_time(22, "v3", "v4")
    load_mod(g, sa, 0, "v2")
    load_mod(g, c1, 1, "v2", plus1=True)
    g(f"s_add_u32 s44, s44, {H1}\ns_add_u32 s45, s45, {H1}")
    for i in range(4):
        for k in range(8):
            g(f"v_pk_fma_f32 {P2(rows[i] + 2 * k)}, {P2(rows[i] + 2 * k)}, {P2(c1 + 2 * k)}, {P2(sa + 2 * k)}")
        pack(g, raw + 8 * i, rows[i], 8)
        for h in range(2):
            g(f"buffer_store_dwordx4 {P4(raw + 8 * i + 4 * h)}, v2, {WS}, {'s44' if i < 2 else 's45'} offen offset:{(i & 1) * 2048 + h * 1024} sc1")
    g(f"""
    s_lshr_b32 s40, s43, 3
    s_lshl_b32 s40, s40, 7
    s_and_b32 s41, s43, 7
    s_lshl_b32 s41, s41, 2
    s_add_u32 s40, s40, s41
    s_add_u32 s40, s40, {FL_LN1}
    """)
    g.lane0_addr("v3", "s40")
    g(f"""
    v_mov_b32 v4, 1
    s_waitcnt vmcnt(0)
    buffer_store_dword v4, v3, {WS}, 0 offen sc1
    """)
    g.dbg_time(2, "v3", "v4")


class RowStage:
    vfr, vfl, vft, vtr, vmod = "v1", "v2", "v3", "v4", "v5"
    raw, st, ma, mb, mc, xs, part = 16, 32, 48, 64, 80, 96, 112

    def __init__(self, g):
        self.g = g

    def mod(self, dst, part):
        g = self.g
        g(f"s_mov_b32 s40, {MOD + part * 4096}")
        for u in range(2):
            for jh in range(2):
                g(f"buffer_load_dwordx4 {P4(dst + 8 * u + 4 * jh)}, {self.vmod}, {WS}, s40 offen offset:{512 * u + 256 * jh} sc1")

    def gate(self, part):
        self.mod(self.ma, part)
        self.g("s_waitcnt vmcnt(0)")
        for i in range(0, 16, 2): self.g(f"v_lshrrev_b32 v{self.ma + i}, 16, v{self.ma + i}")

    def setup(self):
        g = self.g
        g(f"""
        s_mov_b32 {S_SEG}, 0
        s_mov_b32 s29, 1
        s_mov_b32 s26, 0
        s_cmp_eq_u32 {S_WAVE}, 0
        s_cselect_b32 s31, 0, {OOB}
        s_lshl_b32 s40, {S_IDX}, 8
        s_lshl_b32 s41, {S_WAVE}, 15
        s_add_u32 s40, s40, s41
        v_and_b32 v6, 15, {LANE}
        v_lshl_add_u32 {self.vfr}, v6, 4, s40
        v_lshrrev_b32 v6, 4, {LANE}
        v_lshl_add_u32 {self.vfr}, v6, 11, {self.vfr}
        v_and_b32 v6, 3, {LANE}
        v_lshrrev_b32 v7, 5, {LANE}
        v_lshrrev_b32 v8, 2, {LANE}
        s_lshl_b32 s40, {S_WAVE}, 10
        v_lshl_add_u32 {self.vmod}, v8, 4, s40
        s_lshl_b32 s40, {S_IDX}, 13
        s_lshl_b32 s41, {S_WAVE}, 9
        s_add_u32 s40, s40, s41
        v_and_b32 v9, 31, {LANE}
        v_lshl_add_u32 v10, v9, 4, s40
        v_lshl_add_u32 v10, v7, 11, v10
        """)
        g.trace_setup(self.vtr)
        g.page_base("s27", self.raw, 1)
        g.flag_addr(self.vfl, FL_MOD + 32 * 128, 64)
        g.poll(self.vfl, "1", self.vft)

    def frags(self, op, reg, add):
        for u in range(2):
            self.g(f"s_add_u32 s40, s27, {add + u * TPART}\n{op} {P4(reg + 4 * u)}, {self.vfr}, {WS}, s40 offen sc1")

    def combine(self, nk, newer):
        g = self.g
        for k in range(nk):
            for u in range(2):
                g(f"s_waitcnt vmcnt({2 * (nk - k) - u - 1 + newer})")
                for i in range(8):
                    g(f"v_dot2c_f32_bf16 v{self.xs + 8 * u + i}, v{self.part + 8 * k + 4 * u + (i >> 1)}, v{self.ma + 8 * u + i}")
        g("s_nop 2")

    def ask(self):
        self.g(f"buffer_load_dword {self.vft}, {self.vfl}, {WS}, s31 offen sc1")

    def wait_upstream(self):
        g = self.g
        go = g.lab("go")
        g(f"""
        s_cmp_lg_u32 {S_WAVE}, 0
        s_cbranch_scc1 {go}
        s_waitcnt vmcnt(0)
        v_cmp_gt_i32 vcc, s29, {self.vft}
        s_cbranch_vccz {go}
        """)
        g.poll(self.vfl, "s29", self.vft, sleep=1)
        g(f"{go}:\ns_barrier")

    def advance(self, top):
        self.g(f"""
        s_add_u32 {S_SEG}, {S_SEG}, 1
        s_add_u32 s29, s29, 1
        s_add_u32 s26, s26, 65536
        {self.g.next_page('s27')}
        s_cmp_lt_u32 {S_SEG}, {NSEG}
        s_cbranch_scc1 {top}
        """)

    def token_sum(self, s):
        g = self.g
        g(f"v_add_f32 v{s}, v{s}, v{s + 1}")
        for sh in (4, 8): g(f"v_add_f32_dpp v{s}, v{s}, v{s} row_ror:{sh} row_mask:0xf bank_mask:0xf")
        for op in ("v_permlane16_swap_b32", "v_permlane32_swap_b32"):
            g(f"v_mov_b32 v{s + 1}, v{s}\n{op} v{s + 1}, v{s}\nv_add_f32 v{s}, v{s}, v{s + 1}")


def emit_ln2(g):
    r = RowStage(g)
    xs, st, raw = r.xs, r.st, r.raw
    g("L_LN2:")
    g.srd(XS, K_X, 4 << 20)
    r.setup()
    r.mod(r.mb, 3); r.mod(r.mc, 4); r.gate(2)
    for i in range(16): g(f"v_add_f32 v{r.mc + i}, 1.0, v{r.mc + i}")
    g.flag_addr(r.vfl, FL_WO, 32)
    g(f"""
    s_lshl_b32 s62, {S_IDX}, 7
    s_add_u32 s62, s62, {FL_LN2}
    s_lshl_b32 s30, {S_WAVE}, 11
    v_lshl_add_u32 v11, v6, 9, s30
    v_lshl_add_u32 v11, v8, 3, v11
    s_lshl_b32 s40, {S_WAVE}, 5
    s_add_u32 s40, s40, 8192
    v_lshl_add_u32 v12, v6, 3, s40
    v_lshlrev_b32 v13, 3, v6
    v_add_u32 v13, 8192, v13
    """)

    def xfetch(add):
        for v in range(2):
            g(f"s_add_u32 m0, s30, {v * 1024}\ns_add_u32 s40, s26, {add + v * 4096}\nbuffer_load_dwordx4 v10, {XS}, s40 offen nt lds")

    def xread():
        for u in range(2):
            for jh in range(2):
                g(f"ds_read_b64 {P2(raw + 8 + 4 * u + 2 * jh)}, v11 offset:{256 * u + 128 * jh}")
    xfetch(0)
    r.ask()
    g("s_waitcnt vmcnt(1)")
    xread()
    g("s_waitcnt lgkmcnt(0)")
    g.flush()
    g("L_LN2_top:")
    unpack(g, xs, raw + 8, 8)
    g.stamp(0)
    r.wait_upstream()
    g.stamp(1)
    for k in range(4): r.frags("buffer_load_dwordx4", r.part + 8 * k, PWO + 8 * k * TPART)
    xfetch(65536)
    r.combine(4, 2)
    g.stamp(2)
    g(f"v_pk_add_f32 {P2(st)}, {P2(xs)}, {P2(xs + 2)}")
    for k in range(2, 8): g(f"v_pk_add_f32 {P2(st)}, {P2(st)}, {P2(xs + 2 * k)}")
    r.token_sum(st)
    g(f"v_mul_f32 v{st}, {fbits(1 / 256)}, v{st}")
    d = r.part
    for k in range(8): g(f"v_pk_add_f32 {P2(d + 2 * k)}, {P2(xs + 2 * k)}, {P2(st)} op_sel_hi:[1,0] neg_lo:[0,1] neg_hi:[0,1]")
    g(f"v_pk_mul_f32 {P2(st + 2)}, {P2(d)}, {P2(d)}")
    for k in range(1, 8): g(f"v_pk_fma_f32 {P2(st + 2)}, {P2(d + 2 * k)}, {P2(d + 2 * k)}, {P2(st + 2)}")
    r.token_sum(st + 2)
    q = st + 4
    g(f"v_mov_b32 v{st + 1}, v{st + 2}\nds_write_b64 v12, {P2(st)}")
    pack(g, raw, xs, 8)
    g(f"""
    s_waitcnt lgkmcnt(0)
    s_barrier
    ds_read2_b64 {P4(q)}, v13 offset0:0 offset1:4
    ds_read2_b64 {P4(q + 4)}, v13 offset0:8 offset1:12
    """)
    r.frags("buffer_store_dwordx4", raw, X1)
    g(f"""
    s_waitcnt lgkmcnt(0)
    v_pk_add_f32 {P2(st + 2)}, {P2(q)}, {P2(q + 2)}
    v_pk_add_f32 {P2(st + 12)}, {P2(q + 4)}, {P2(q + 6)}
    v_pk_add_f32 {P2(st + 2)}, {P2(st + 2)}, {P2(st + 12)}
    v_mul_f32 v{st + 2}, 0x3e800000, v{st + 2}
    v_mul_f32 v{st + 3}, {fbits(1 / 256)}, v{st + 3}
    """)
    for k in range(4): g(f"v_sub_f32 v{q + 2 * k}, v{q + 2 * k}, v{st + 2}")
    for k in range(4): g(f"v_fmac_f32 v{st + 3}, v{q + 2 * k}, v{q + 2 * k}")
    g(f"""
    v_mul_f32 v{st + 3}, 0x3e800000, v{st + 3}
    v_add_f32 v{st + 3}, {fbits(1e-5)}, v{st + 3}
    v_rsq_f32 v{st + 12}, v{st + 3}
    v_sub_f32 v{st}, v{st}, v{st + 2}
    v_mul_f32 v{st}, v{st}, v{st + 12}
    """)
    for u in range(2):
        for k in range(4 * u, 4 * u + 4):
            g(f"v_pk_fma_f32 {P2(d + 2 * k)}, {P2(d + 2 * k)}, {P2(st + 12)}, {P2(st)} op_sel_hi:[1,0,0]")
        for k in range(4 * u, 4 * u + 4):
            g(f"v_pk_fma_f32 {P2(d + 2 * k)}, {P2(d + 2 * k)}, {P2(r.mc + 2 * k)}, {P2(r.mb + 2 * k)}")
        pack(g, d + 16 + 4 * u, d + 8 * u, 4)
        g(f"s_add_u32 s40, s27, {H2 + u * TPART}\nbuffer_store_dwordx4 {P4(d + 16 + 4 * u)}, {r.vfr}, {WS}, s40 offen sc1")
    g.stamp(3)
    g.trace_flush(st, drain=False)
    r.ask()
    g("s_waitcnt vmcnt(5)")
    xread()
    g("s_waitcnt vmcnt(1) lgkmcnt(0)\ns_barrier")
    g.signal("s62", "s29", 0)
    r.advance("L_LN2_top")
    g("s_branch L_END")


def emit_fin(g):
    r = RowStage(g)
    xs, raw = r.xs, r.raw
    PITCH = 544
    g("L_FIN:")
    g.srd(XS, K_OUT, 4 << 20)
    r.setup()
    r.gate(5)
    g.flag_addr(r.vfl, FL_F2, 24)
    g(f"""
    s_mul_i32 s30, {S_WAVE}, {4 * PITCH}
    v_mul_u32_u24 v11, {PITCH}, v6
    v_lshl_add_u32 v11, v8, 3, v11
    v_add_u32 v11, s30, v11
    v_mul_u32_u24 v12, {PITCH}, v7
    v_lshl_add_u32 v12, v9, 4, v12
    v_add_u32 v12, s30, v12
    """)
    r.ask()
    g.flush()
    g("L_FIN_top:")
    g.stamp(0)
    r.wait_upstream()
    g.stamp(1)
    r.frags("buffer_load_dwordx4", raw, X1)
    for k in range(3): r.frags("buffer_load_dwordx4", r.part + 8 * k, PF2 + 8 * k * TPART)
    g("s_waitcnt vmcnt(6)")
    unpack(g, xs, raw, 8)
    r.combine(3, 0)
    r.ask()
    g.stamp(2)
    pack(g, raw, xs, 8)
    for u in range(2):
        for jh in range(2):
            g(f"ds_write_b64 v11, {P2(raw + 4 * u + 2 * jh)} offset:{256 * u + 128 * jh}")
    for v in range(2): g(f"ds_read_b128 {P4(r.part + 4 * v)}, v12 offset:{2 * v * PITCH}")
    for v in range(2):
        g(f"s_add_u32 s40, s26, {v * 4096}\ns_waitcnt lgkmcnt({1 - v})\nbuffer_store_dwordx4 {P4(r.part + 4 * v)}, v10, {XS}, s40 offen{' nt' if g.opt.get('ont') else ''}")
    g.stamp(3)
    g.trace_flush(r.st, drain=False)
    r.advance("L_FIN_top")
    g.dbg_time(9, r.vfl, r.vft)
    g("s_branch L_END")


SM_SCALE = 128 ** -0.5 * LOG2E
```

```python
from common import *
from gstage import fbits
from light import SM_SCALE, P2, P4

S_SEL, S_MEM, S_O, S_VM, S_LX, S_MEML = "s26", "s27", "s28", "s29", "s36", "s37"
S_FORCE = "s51"
S_DP, S_DM = "s52", "s53"
STAGE = 0x20000
POS = [((p >> 1) & 3, (p & 1) + 2 * (p >> 3)) for p in range(16)]
bits = lambda m: [j for j in range(16) if int(m[1:], 16) >> j & 1]
POS_OF = {ab: p for p, ab in enumerate(POS)}


class Rec:
    def __init__(self, g):
        self.g = g
        v = self.v = Regs("v", 1, 128)
        self.A = v.get(16, 4)
        self.S = v.get(32, 4)
        self.acc = v.get(16, 4)
        self.RM = v.get(8, 4)
        self.pt = v.get(4, 4)
        self.ones = v.get(4, 4)
        self.vst = [f"v{v.get()}" for _ in range(4)]
        (self.vsr, self.vml, self.vmr, self.vidx, self.vchk, self.vtrig, self.vsnd, self.vvm, self.vtrc,
         self.vstep) = (f"v{v.get()}" for _ in range(10))

    def both(self, op, data, vaddr, soff, stmp="s40"):
        return [f"{op} {data}, {vaddr}, {WS}, {soff} offen sc1",
                f"s_xor_b32 {stmp}, {soff}, {LOCX}\n{op} {data}, {vaddr}, {WS}, {stmp} offen"]

    def same_side(self, op, data, vaddr, soff):
        a, b = self.g.lab("wt"), self.g.lab("wtd")
        return f"""
        s_cmp_eq_u32 {S_LX}, 0
        s_cbranch_scc1 {a}
        {op} {data}, {vaddr}, {WS}, {soff} offen
        s_branch {b}
        {a}:
        {op} {data}, {vaddr}, {WS}, {soff} offen sc1
        {b}:
        """

    def sparse_loader(self, rounds):
        g = self.g
        g(f"s_lshl_b32 s41, {S_WAVE}, 15")
        chunks = [(r, b) for r in rounds for b in range(4)]

        def issue(c):
            r, b = chunks[c]
            if b == 0 and r.get("setup"): r["setup"]()
            for p in range(4):
                for hi in range(2):
                    g(f"""
                    s_add_u32 m0, s41, {b * 8192 + p * 2048 + hi * 1024}
                    s_add_u32 s42, {r['sadd'](b)}, {r['off'](b, p, hi)}
                    buffer_load_dwordx4 {r['vsrc']}, {WW}, s42 offen{'' if g.opt.get('polq', 0) == 0 else ' nt'} lds
                    """)
        for c in range(3): issue(c)
        n = len(chunks)
        for c in range(n):
            g(f"s_waitcnt vmcnt({8 * min(2, n - 1 - c)}) lgkmcnt(0)\ns_barrier")
            if g.opt.get("ltimes") and c % 4 == 3:
                g(f"s_memrealtime s[{30 + 2 * (c // 4)}:{31 + 2 * (c // 4)}]")
            if c + 3 < n: issue(c + 3)
            for ins in chunks[c][0]["reads"](chunks[c][1]): g(ins)
            self.scalar_chores(c)
            if c >= n - 4:
                g("s_waitcnt lgkmcnt(0)\ns_barrier")
                for k in range(8):
                    g(f"ds_write_b128 {self.vsr}, {P4(self.S + 4 * k)} offset:{chunks[c][1] * 8192 + k * 1024}")
        g("s_waitcnt lgkmcnt(0)")
        if g.opt.get("ltimes"):
            for k in range(4): g(f"v_mov_b32 v{self.S + k}, s{30 + 2 * k}")
            g(f"v_mov_b32 v{self.pt}, {96 + 16 * self.role}\nbuffer_store_dwordx4 {P4(self.S)}, v{self.pt}, {DBG}, 0 offen\ns_waitcnt vmcnt(0)")

    def mem_round(self, vl, scol, dst, setup=None):
        vs = f"v{self.lv.get()}"
        self.g(f"v_add_u32 {vs}, {scol}, {vl}")
        off = lambda b, p, hi: (256 * b + 32 * (p >> 1) + (p & 1) + 8 * hi) * 8192
        if dst is None: d = lambda a, b, p: P2(self.S + 8 * a + 2 * p)
        else: d = lambda a, b, p: dst(POS_OF[a, b], p)
        reads = lambda b: [f"ds_read_b64_tr_b16 {d(a, b, p)}, {self.vtr[a]} offset:{b * 8192 + p * 2048}"
                           for a in range(4) for p in range(4)]
        return dict(setup=setup, vsrc=vs, off=off, reads=reads, sadd=lambda b: S_DP if b < 2 else S_DM)

    def addr_setup(self):
        g = self.g
        self.lv = Regs("v", self.A, self.A + 16)
        self.vtr = [f"v{self.lv.get()}" for _ in range(4)]
        vt = f"v{self.pt}"
        g.tr_lane(self.vtr[0], vt, S_WAVE)
        g(f"""
        s_lshl_b32 s40, {S_WAVE}, 15
        v_add_u32 {self.vtr[0]}, s40, {self.vtr[0]}
        v_lshl_add_u32 {self.vsr}, {LANE}, 4, s40
        s_lshl_b32 s40, {S_WAVE}, 12
        s_add_u32 s40, s40, {STAGE}
        v_lshl_add_u32 {self.vst[0]}, {LANE}, 4, s40
        s_lshr_b32 s54, {S_IDX}, 4
        s_lshl_b32 {S_DP}, s54, 22
        s_sub_u32 {S_DM}, 0, {S_DP}
        """)
        for a in range(1, 4):
            g(f"v_xor_b32 {self.vtr[a]}, {a << 15}, {self.vtr[0]}\nv_xor_b32 {self.vst[a]}, {a << 12}, {self.vst[0]}")
        vl = f"v{self.lv.get()}"
        g.src_lane(vl, vt, 8192, 2, r1=4, r0=16)
        g(f"s_lshl_b32 s40, {S_WAVE}, 19\nv_add_u32 {vl}, s40, {vl}")
        return vl

    def scalar_chores(self, c):
        g = self.g
        first, last = ((g.opt.get("p0", 9), g.opt.get("p1", 10)), (3, 3))[self.role]
        if not first <= c <= last: return
        skip = g.lab("chore")
        g(f"s_cmp_lg_u32 {S_WAVE}, 0\ns_cbranch_scc1 {skip}")
        if c == first:
            g.scalar_init_wait()
            g(f"""
            s_mov_b32 s46, 0xffff
            s_and_b32 s40, {S_IDX}, 3
            s_lshl_b32 s40, s40, 13
            s_lshr_b32 s43, {S_IDX}, 2
            s_lshl_b32 s43, s43, 10
            s_add_u32 s43, s43, s40
            s_add_u32 s43, s43, {PROBE + 512 * self.role}
            """)
        g(f"""
        s_waitcnt lgkmcnt(0)
        s_memtime s[64:65]
        s_waitcnt lgkmcnt(0)
        s_load_dword s68, s[4:5], s43 glc
        s_waitcnt lgkmcnt(0)
        s_memtime s[66:67]
        s_waitcnt lgkmcnt(0)
        s_sub_u32 s64, s66, s64
        s_min_u32 s46, s46, s64
        """)
        if c == last:
            g(f"""
            s_getreg_b32 s55, hwreg(HW_REG_XCC_ID)
            s_and_b32 s55, s55, 15
            s_lshl_b32 s46, s46, 8
            s_or_b32 s46, s46, s55
            s_add_u32 s40, {S_IDX}, {self.role * 32}
            s_lshl_b32 s40, s40, 7
            s_add_u32 s40, s40, {FL_TAB}
            """)
            g.signal("s40", "s46")
        g(f"{skip}:")

    def census(self):
        g = self.g
        t0, t1, t2 = (f"v{self.pt + k}" for k in range(3))
        g("s_getreg_b32 s55, hwreg(HW_REG_XCC_ID)\ns_and_b32 s55, s55, 15")
        g.flag_addr(t0, FL_TAB, 64)
        g.poll(t0, "0", t1, sleep=1)
        g(f"""
        v_and_b32 {t2}, 15, {t1}
        v_cmp_ne_u32 vcc, s55, {t2}
        s_lshl_b32 s40, s54, 4
        s_lshl_b32 s40, 0xffff, s40
        s_or_b32 s41, vcc_lo, vcc_hi
        s_and_b32 s40, s40, s41
        s_cselect_b32 {S_LX}, 0, {LOCX if g.opt.get('local', 1) else 0}
        """)
        show = lambda: g(f"""
            v_min_u32 {t0}, 3, {LANE}
            v_lshlrev_b32 {t0}, 2, {t0}
            s_mov_b64 exec, 15
            buffer_store_dword {t1}, {t0}, {DBG}, 0 offen offset:80
            s_mov_b64 exec, -1
            """)
        g.pick_sel(S_SEL, t1, t2, show if g.opt.get("times") else None)

    def common_setup(self):
        g = self.g
        t0, t1 = f"v{self.pt}", f"v{self.pt + 1}"
        self.census()
        g(f"""
        s_lshr_b32 s40, {S_WAVE}, 1
        s_mul_i32 s40, s40, {CH}
        s_and_b32 s41, {S_WAVE}, 1
        s_lshl_b32 s41, s41, 10
        s_add_u32 s40, s40, s41
        s_lshl_b32 s41, s54, 12
        s_add_u32 s40, s40, s41
        v_lshl_add_u32 {self.vml}, {LANE}, 4, s40
        v_xor_b32 {self.vmr}, 0x1000, {self.vml}
        v_and_b32 {t0}, 2, {LANE}
        v_cmp_eq_u32 vcc, 0, {t0}
        v_mov_b32 {t0}, 0xeeee
        v_mov_b32 {t1}, 0x4444
        v_cndmask_b32 {self.vidx}, {t0}, {t1}, vcc
        s_lshr_b32 s40, {S_IDX}, 2
        s_mul_i32 s40, s40, {CH}
        s_and_b32 s41, {S_IDX}, 3
        s_lshl_b32 s41, s41, 11
        s_add_u32 s47, s40, s41
        s_lshl_b32 s41, {S_WAVE}, 9
        s_add_u32 s47, s47, s41
        v_lshl_add_u32 {self.vvm}, {LANE}, 3, s47
        s_lshl_b32 s41, s54, 12
        s_add_u32 s40, s41, {TRIG}
        s_add_u32 s40, s40, {S_SEL}
        v_lshrrev_b32 {t0}, 2, {LANE}
        v_lshl_add_u32 {t0}, {t0}, 7, s40
        v_and_b32 {t1}, 3, {LANE}
        v_lshl_add_u32 {self.vtrig}, {t1}, {g.opt.get('fsh', 2)}, {t0}
        s_mov_b32 s57, s40
        s_cmp_eq_u32 {S_LX}, 0
        s_cselect_b32 s56, 1, {S_WAVE}
        s_and_b32 s41, {S_IDX}, 15
        s_lshl_b32 s41, s41, 7
        s_lshl_b32 s40, {S_WAVE}, {g.opt.get('fsh', 2)}
        s_add_u32 s40, s40, s41
        s_add_u32 s40, s40, {self.send_off}
        s_mov_b32 {S_SEG}, 0
        s_mov_b32 s60, 0
        s_mov_b32 s61, 0
        s_mov_b32 {S_FORCE}, -1
        """)
        g.lane0_addr(self.vsnd, "s40")
        for i in range(4): g(f"v_mov_b32 v{self.ones + i}, -1")
        g.trace_setup(self.vtrc)

    def warm_rings(self, items):
        g = self.g
        if not g.opt.get("rwarm", 1): return
        for k in range(4):
            g(f"s_mov_b32 {S_SEG}, {k}")
            g("\n".join(self.step_bases()))
            for va, so, x in items:
                g(f"s_xor_b32 s40, {so}, {x}\nbuffer_load_dword {self.vchk}, {va}, {WS}, s40 offen sc1")
        g(f"buffer_load_dword {self.vchk}, {self.vtrig}, {WS}, 0 offen offset:{2048 - self.send_off} sc1\ns_mov_b32 {S_SEG}, 0")

    def step_bases(self):
        return f"""
        s_and_b32 s40, {S_SEG}, 3
        s_lshl_b32 s40, s40, 16
        s_add_u32 {S_MEM}, s40, {S_SEL}
        s_add_u32 {S_MEM}, {S_MEM}, {MEM_RING}
        s_xor_b32 {S_MEML}, {S_MEM}, {S_LX}
        s_lshl_b32 s40, s40, 2
        s_add_u32 {S_O}, s40, {S_SEL}
        s_lshr_b32 s40, s40, 5
        s_and_b32 s40, s40, 0x4000
        s_xor_b32 {S_O}, {S_O}, s40
        s_xor_b32 {S_VM}, {S_O}, 0x4000
        """.strip().split("\n")

    def trigger(self, off, own=False):
        g, t = self.g, self.pt
        top, done = g.lab("trig"), g.lab("trigd")
        ld = lambda k: f"buffer_load_dword v{t + k}, {self.vtrig}, {WS}, 0 offen offset:{off} sc1"
        g.flush()
        g(f"""
        {f"s_cmp_eq_u32 {S_LX}, 0" if own else "s_cmp_lg_u32 s56, 0"}
        s_cbranch_scc1 {done}
        {"s_mov_b64 exec, 0xffff" if own else ""}
        s_sleep {g.opt.get("vwait", 5)}
        {ld(0)}
        s_sleep 1
        {ld(1)}
        s_sleep 1
        {ld(2)}
        s_sleep 1
        {top}:
        """)
        g.budget()
        for k in range(4):
            g(f"""
            {ld((k + 3) % 4)}
            s_waitcnt vmcnt(3)
            v_cmp_gt_i32 vcc, {S_SEG}, v{t + k}
            {f's_cbranch_vccz {done}' if k < 3 else f's_cbranch_vccnz {top}'}
            """)
        g(f"""
        {done}:
        {"s_mov_b64 exec, -1" if own else "s_barrier"}
        """)

    def send(self):
        return [f"buffer_store_dword {self.vstep}, {self.vsnd}, {WS}, s57 offen"]

    def sread(self, pos):
        a, b = POS[pos]
        return [f"ds_read_b128 {P4(self.S + 8 * (pos & 3) + 4 * h)}, {self.vsr} offset:{b * 8192 + a * 2048 + h * 1024}" for h in range(2)]

    def aread(self, pos):
        a, b = POS[pos]
        return f"ds_read_b128 {P4(self.A + 4 * (pos & 3))}, {self.vst[a]} offset:{b * 1024}"

    def zero_acc(self):
        for i in range(0, 4 * self.nt, 2): self.g(f"v_mov_b64 {P2(self.acc + i)}, 0")

    def pre_project(self):
        self.zero_acc()
        for pos in range(4):
            for r in self.sread(pos): self.g(r)

    def rloads(self):
        return [f"buffer_load_dwordx4 {P4(self.RM + 4 * b)}, {self.vmr}, {WS}, {S_MEM} offen offset:{b * 2048} sc1" for b in range(2)]

    def project(self, nm, hooks):
        g, nt, A, RM = self.g, self.nt, self.A, self.RM
        q = []

        def ds(ins, tag):
            g(ins); q.append(tag)

        def wait_for(tags):
            last = max((i for i, t in enumerate(q) if t in tags), default=-1)
            if last >= 0:
                g(f"s_waitcnt lgkmcnt({min(15, len(q) - 1 - last)})")
                del q[:last + 1]

        def smf(pos, t):
            b = R("v", self.S + 8 * (pos & 3), 8) if t == nt - 1 else self.wt(t, pos)
            a = RM + 4 * (pos - 8) if pos in (8, 9) else A + 4 * (pos & 3)
            return f"v_smfmac_f32_16x16x64_bf16 {P4(self.acc + 4 * t)}, {P4(a)}, {b}, {self.vidx}"

        def group(pos, fill):
            for i, t in enumerate(self.order):
                g(smf(pos, t))
                for _ in range(-(-len(fill) // (nt - i))):
                    ins, tag = fill.pop(0)
                    if tag: ds(ins, tag)
                    else: g(ins)

        def chk(x, first):
            return [f"v_max3_u32 {self.vchk}, v{x}, v{x + 1}, {'v%d' % (x + 2) if first else self.vchk}",
                    f"v_max3_u32 {self.vchk}, v{x + 2}, v{x + 3}, {self.vchk}"]
        wr = lambda x, b: (f"ds_write_b128 {self.vst[0]}, {P4(x)} offset:{b * 1024}", "w")
        sr = lambda p: [(r, ("S", p)) for r in self.sread(p)] if p < 16 else []
        ar = lambda p: [(self.aread(p), ("A", p))]

        g(f"L_{nm}_retry:")
        for b in range(2):
            g(f"buffer_load_dwordx4 {P4(A + 4 * b)}, {self.vml}, {WS}, {S_MEML} offen offset:{b * 2048} sc1\ns_nop 0")
        early = g.opt.get("rl", "g1") == "early"
        if early: g("\ns_nop 0\n".join(self.rloads()))
        g(f"s_waitcnt vmcnt({3 if early else 1}) lgkmcnt(0)")
        g.stamp(1)
        if g.opt.get("rl", "p0") == "p0":
            early = True
            g("\n".join(self.rloads()))
        group(0, [wr(A, 0)] + [(c, None) for c in chk(A, True)])
        g(f"s_waitcnt vmcnt({2 if early else 0})")
        ds(*wr(A + 4, 1))
        for c in chk(A + 4, False): g(c)
        g(f"v_cmp_eq_u32 vcc, -1, {self.vchk}\ns_cbranch_vccnz L_{nm}_bad")
        g("s_waitcnt lgkmcnt(0)\ns_barrier")
        q.clear()
        for p in (2, 3): ds(self.aread(p), ("A", p))
        group(1, [(r, None) for r in ([] if early else self.rloads())] + ar(4) + sr(4))
        rv = g.opt.get("rv", 7)
        for pos in range(2, 16):
            fill = sr(pos + 3)
            if pos + 3 < 8 or (pos >= rv + 2 and 9 < pos + 3 < 16): fill = ar(pos + 3) + fill
            wait_for({("A", pos), ("S", pos)})
            if pos == rv:
                g(f"L_{nm}_rchk:\ns_waitcnt vmcnt(0)")
                ds(*wr(RM, 2)); ds(*wr(RM + 4, 3))
                for c in chk(RM, True) + chk(RM + 4, False): g(c)
                g(f"v_cmp_eq_u32 vcc, -1, {self.vchk}\ns_cbranch_vccnz L_{nm}_rbad")
            if pos == rv + 1:
                wait_for({"w"})
                g("s_barrier")
                fill = [x for p in range(10, pos + 4) for x in ar(p)] + fill
            group(pos, fill + hooks.get(pos, []))
        self.q = q

    def stream(self, nm, ring, load, smfs, lds, guards, shift, restart, extra={}, ctr="s61", first=99):
        g, W = self.g, len(ring)
        q, lq, stubs, fill = [], [], [], []
        g(f"L_{nm}_again:")
        nxt = min(first, W - 1)
        for j in range(nxt):
            g(load(j) + "\ns_nop 0"); q.append(load(j))

        def put(n):
            for _ in range(min(n, len(fill))):
                ins, tag = fill.pop(0)
                g(ins)
                if tag is not None: lq.append(tag)

        def product(j, i):
            if i == len(smfs(j)) - 1 and j in lq:
                last = len(lq) - 1 - lq[::-1].index(j)
                g(f"s_waitcnt lgkmcnt({len(lq) - 1 - last})")
                del lq[:last + 1]
            assert j not in [t for _, t in fill]
            g(smfs(j)[i])
        n = len(smfs(0))
        for j in range(17):
            if j < 16:
                del q[:q.index(load(j))]
                g(f"s_waitcnt vmcnt({len(q) - 1})")
                if j == 0: g.stamp(self.first_stamp)
                if g.opt.get("inner") and j in (4, 8, 12): g.stamp(6 + j // 4)
                if j in guards: g(f"v_cmp_eq_u32 vcc, -1, v{ring[j % W]}")
            for i in range(n - shift, n if j else 0):
                product(j - 1, i)
                if i < n - 1: put(1)
            if j == 16: break
            if j in guards:
                stubs.append((j, list(q)))
                g(f"s_cbranch_vccnz L_{nm}_g{j}\nL_{nm}_ok{j}:")
            q.pop(0)
            upto = min(16, j + W, nxt + 2)
            vm = [load(k) for k in range(nxt, upto)] + extra.get(j, [])
            nxt = max(nxt, upto)
            q += vm
            alone = j in guards and g.opt.get("alone", 1) and n > 2
            if not alone: g("\n".join(vm))
            fill += lds(j)
            if not vm and not alone: put(1)
            for i in range(n - shift):
                product(j, i)
                if alone and i == 0:
                    g("\n".join(vm))
                    if not vm and len(fill) > 2: put(1)
                if i < n - shift - 1 or j + 1 not in guards: put(1)
        put(99)
        verdict = f"s_cbranch_vccnz L_{nm}_nan\nL_{nm}_done:"

        def cold():
            g(f"""
            L_{nm}_nan:
            s_cmp_eq_u32 {S_FORCE}, {S_SEG}
            s_cbranch_scc1 L_{nm}_done
            s_mov_b32 {S_FORCE}, {S_SEG}
            s_add_u32 {ctr}, {ctr}, 0x10000
            s_waitcnt vmcnt(0) lgkmcnt(0)
            """)
            for j0 in range(0, 16, 4):
                g(f"L_{nm}_v{j0}:")
                g.budget()
                for j in range(j0, j0 + 4): g(load(j))
                g(f"v_mov_b32 {self.vchk}, 0\ns_waitcnt vmcnt(0)")
                for j in range(j0, j0 + 4):
                    x = ring[j % W]
                    g(f"v_max3_u32 {self.vchk}, v{x}, v{x + 1}, {self.vchk}\nv_max3_u32 {self.vchk}, v{x + 2}, v{x + 3}, {self.vchk}")
                g(f"v_cmp_eq_u32 vcc, -1, {self.vchk}\ns_cbranch_vccnz L_{nm}_v{j0}")
            restart()
            g.flush()
            g(f"s_branch L_{nm}_again")
            for j, qq in stubs:
                x = ring[j % W]
                g(f"L_{nm}_g{j}:")
                g.budget()
                g(f"""
                s_add_u32 {ctr}, {ctr}, {1 if j < 8 else 0x100}
                {qq[0]}
                s_waitcnt vmcnt(0)
                v_cmp_eq_u32 vcc, -1, v{x}
                s_cbranch_vccnz L_{nm}_g{j}
                """)
                rest = [ring[k % W] for k in range(j + 1, 16) if load(k) in qq]
                if rest and g.opt.get("smart", 1):
                    g(f"v_mov_b32 {self.vchk}, 0")
                    for a, b in zip(rest[::2], (rest + rest[-1:])[1::2]): g(f"v_max3_u32 {self.vchk}, v{a}, v{b}, {self.vchk}")
                    g(f"v_cmp_eq_u32 vcc, -1, {self.vchk}\ns_cbranch_vccz L_{nm}_ok{j}")
                for ins in qq[1:]: g(ins + "\ns_nop 0")
                g(f"s_branch L_{nm}_ok{j}")
        return verdict, cold

    def bad_stubs(self, nm):
        g = self.g
        g(f"L_{nm}_bad:\ns_nop 7")
        g.budget()
        g("s_add_u32 s60, s60, 1")
        self.zero_acc()
        g.flush()
        g(f"s_branch L_{nm}_retry\nL_{nm}_rbad:")
        g.budget()
        g("s_add_u32 s60, s60, 0x10000\ns_waitcnt lgkmcnt(0)")
        for r in self.rloads(): g(r)
        g(f"s_branch L_{nm}_rchk")

    def report(self, slot):
        g = self.g
        if not g.opt.get("times"): return
        skip = g.lab("norep")
        g(f"""
        s_lshl_b32 s40, {S_IDX}, 2
        s_add_u32 s40, s40, {S_WAVE}
        s_cmp_lg_u32 s40, 0
        s_cbranch_scc1 {skip}
        v_mov_b32 v{self.pt}, {slot * 4}
        v_mov_b32 v{self.pt + 2}, s60
        v_mov_b32 v{self.pt + 3}, s61
        buffer_store_dwordx2 {P2(self.pt + 2)}, v{self.pt}, {DBG}, 0 offen
        s_lshl_b32 s40, {S_LX}, 4
        s_or_b32 s40, s40, {S_SEL}
        v_mov_b32 v{self.pt + 1}, s40
        v_mov_b32 v{self.pt}, {DBG_SEL}
        buffer_store_dword v{self.pt + 1}, v{self.pt}, {DBG}, 0 offen
        s_waitcnt vmcnt(0)
        {skip}:
        """)


class QK(Rec):
    role, nt, order, send_off = 0, 4, (0, 2, 1, 3), 2048

    def wt(self, t, pos, n=8, p=0):
        return wreg(t * 128 + pos * 8 + 2 * p, n)

    def emit(self):
        g, v = self.g, self.v
        VX = v.get(8, 4)
        VM, ONE = v.get(4, 4), v.get(4, 4)
        Z = v.get(10, 2)
        PA, PB, PC, PD = Z + 2, Z + 6, Z, Z + 4
        v16, vopub, vtw = (f"v{v.get()}" for _ in range(3))
        vtr = [f"v{v.get()}" for _ in range(4)]
        A, S, acc, RM = self.A, self.S, self.acc, self.RM
        t0, t1 = f"v{self.pt}", f"v{self.pt + 1}"
        NEG, MASK = self.vml, [f"s[{k}:{k + 1}]" for k in (8, 10, 16, 18, 42, 44, 52, 54)]
        g("L_QK:")
        vl = self.addr_setup()
        g(f"s_lshl_b32 s44, {S_IDX}, 8\ns_add_u32 s45, s44, 128")
        g.srd(WW, K_WQ, 8 << 20)
        dst = lambda t: (lambda pos, p: self.wt(t, pos, 2, p))
        self.sparse_loader([self.mem_round(vl, "s44", dst(0)), self.mem_round(vl, "s45", dst(1)),
                            self.mem_round(vl, "s44", dst(2), lambda: g.srd(WW, K_WK, 8 << 20)),
                            self.mem_round(vl, "s45", None)])
        g.dbg_time(1, t0, t1)
        self.common_setup()
        for r in range(10): g(f"v_mov_b32 v{Z + r}, 0")
        for i in range(4): g(f"v_mov_b32 v{ONE + i}, 0x3f803f80")
        TX = STAGE + 16384 + 2048
        g(f"""
        v_lshlrev_b32 {v16}, 4, {LANE}
        s_lshl_b32 s58, {S_WAVE}, 12
        s_add_u32 s40, s58, {TX}
        s_add_u32 s58, s58, {STAGE}
        v_lshrrev_b32 {t0}, 4, {LANE}
        v_bfe_u32 {t1}, {LANE}, 1, 2
        v_xor_b32 {t0}, {t0}, {t1}
        v_lshl_add_u32 {t0}, {t0}, 4, s40
        v_and_b32 {t1}, 15, {LANE}
        v_lshl_add_u32 {vtw}, {t1}, 6, {t0}
        v_bfe_u32 {t0}, {LANE}, 3, 2
        v_xor_b32 {t0}, {t0}, {LANE}
        v_lshl_add_u32 {vtr[0]}, {t0}, 4, s40
        v_bfe_u32 {t0}, {LANE}, 4, 1
        v_lshlrev_b32 {t0}, 1, {t0}
        v_and_b32 {t1}, 13, {LANE}
        v_or_b32 {t0}, {t0}, {t1}
        v_lshl_add_u32 {vopub}, {t0}, 4, s47
        v_lshrrev_b32 {t0}, 5, {LANE}
        v_lshl_add_u32 {vopub}, {t0}, 8, {vopub}
        v_and_b32 {t0}, 2, {LANE}
        v_cmp_eq_u32 vcc, 0, {t0}
        v_mov_b32 {t1}, {OOB}
        v_cndmask_b32 {vopub}, {vopub}, {t1}, vcc
        s_lshl_b32 s43, {S_IDX}, 2
        s_add_u32 s43, s43, {S_WAVE}
        s_and_b32 s46, {S_WAVE}, 1
        s_lshl_b32 s46, s46, 10
        s_mul_i32 s32, {S_IDX}, {THEAD}
        s_lshl_b32 s40, {S_WAVE}, 11
        s_add_u32 s32, s32, s40
        s_and_b32 s40, {S_SEL}, 0x2000
        s_xor_b32 s40, s40, {TOK + g.opt.get("far", 0) * 0x2000}
        s_add_u32 s32, s32, s40
        s_add_u32 s30, s32, s46
        s_add_u32 s30, s30, {3 * TPART}
        s_lshl_b32 s59, {S_IDX}, 7
        s_add_u32 s59, s59, {FL_QKV}
        s_lshl_b32 s62, {S_IDX}, 7
        s_add_u32 s62, s62, {FL_QK}
        s_mov_b32 s38, {fbits(SM_SCALE)}
        s_mov_b32 s39, s38
        """)
        for a in range(1, 4): g(f"v_xor_b32 {vtr[a]}, {a << 12}, {vtr[0]}")
        g(f"""
        v_readfirstlane_b32 s88, {self.vml}
        s_xor_b32 s41, s47, {4 * CH}
        v_min_u32 {t0}, 3, {LANE}
        v_lshl_add_u32 {self.vmr}, {t0}, 7, s41
        v_lshrrev_b32 {t0}, 4, {LANE}
        v_lshlrev_b32 {t0}, 2, {t0}
        v_and_b32 {t1}, 15, {LANE}
        v_sub_u32 {t0}, {t1}, {t0}
        s_lshr_b32 s41, s46, 6
        v_add_u32 {t0}, s41, {t0}
        v_and_b32 {self.vvm}, 0xfffffdff, {self.vvm}
        v_mov_b32 {NEG}, {fbits(-1e9 * 128 ** 0.5)}
        """)
        for k in range(8): g(f"v_cmp_le_i32 {MASK[k]}, {16 * (k >> 2) + (k & 3)}, {t0}")
        for a in range(1, 4): g(f"s_xor_b32 s{88 + a}, s88, {(a >> 1) * CH + (a & 1) * 1024}")
        ask = "s_load_dwordx2 s[100:101], s[4:5], s59 glc"

        def ready():
            top, have, skip = g.lab("ask"), g.lab("have"), g.lab("skip")
            g(f"""
            s_cmp_lg_u32 {S_WAVE}, 1
            s_cbranch_scc1 {skip}
            {top}:
            s_min_i32 s47, s100, s101
            s_cmp_ge_i32 s47, s33
            s_cbranch_scc1 {have}
            {ask}
            """)
            g.budget()
            g(f"""
            s_waitcnt lgkmcnt(0)
            s_branch {top}
            {have}:
            s_add_u32 s33, s33, 2
            s_min_u32 s33, s33, {NSEG}
            s_cmp_ge_i32 s47, s33
            s_cbranch_scc1 {skip}
            {ask}
            {skip}:
            s_barrier
            """)
        dma = lambda off: f"buffer_load_dwordx4 {v16}, {WS}, s31 offen offset:{off} sc1 lds"
        fetch = [f"s_add_u32 m0, s58, 16384\ns_add_u32 s31, s32, {TPART}\n{dma(0)}", dma(1024),
                 f"s_add_u32 m0, s58, 2048\ns_add_u32 s31, s32, {2 * TPART}\n{dma(0)}", dma(1024),
                 f"s_mov_b32 m0, s58\ns_add_u32 s31, s32, s46\n{dma(0)}", f"s_sub_u32 s31, s32, s46\n{dma(1024)}"]
        bases = self.step_bases() + [f"s_xor_b32 s34, {S_O}, 0x84000", f"s_xor_b32 s48, {S_O}, {LOCX}",
                                     "s_lshr_b32 s40, s46, 1", f"s_add_u32 {S_VM}, {S_VM}, s40", f"s_xor_b32 s35, {S_VM}, 512"]
        for a in range(4):
            bases += [f"s_add_u32 s{92 + a}, {S_MEML}, s{88 + a}", f"s_add_u32 s{96 + a}, {S_MEM}, s{88 + a}",
                      f"s_xor_b32 s{96 + a}, s{96 + a}, 0x1000"]
        allw = g.opt.get("fa", "red") not in ("bar", "pub")
        if allw:
            g(f"""
            v_lshrrev_b32 {t0}, 4, {LANE}
            v_lshl_add_u32 {t0}, {t0}, 7, s57
            v_and_b32 {t1}, 15, {LANE}
            v_lshl_add_u32 {self.vtrig}, {t1}, 2, {t0}
            """)
        self.warm_rings([(vopub, S_O, LOCX)])
        g.dbg_time(19, t0, t1)
        g("s_mov_b32 s33, 1\ns_mov_b64 s[100:101], 0")
        ready()
        g.dbg_time(14, t0, t1)
        g("\n".join(fetch + bases))
        g.phase("pq")
        g(f";@hot\nL_QK_top:\nv_mov_b32 {self.vstep}, {S_SEG}")
        self.pre_project()
        if not g.opt.get("inner"): g.stamp(6)
        g(f"""
        s_waitcnt lgkmcnt(0)
        s_and_b32 s40, {S_SEG}, {NSEG - 1}
        s_cselect_b32 s40, s56, 1
        s_cmp_lg_u32 s40, 0
        s_cbranch_scc1 L_QK_park
        v_mov_b32 {t0}, -1
        {"" if allw else "s_mov_b64 exec, 0xffff"}
        s_sleep {g.opt.get("qwait", 4)}
        L_QK_spin:
        """)
        g.budget()
        g("s_waitcnt vmcnt(40)")
        for k in range(4):
            g(f"""
            buffer_load_dword {t0}, {self.vtrig}, {WS}, 0 offen sc1
            s_nop {g.opt.get("spin", 3)}
            v_cmp_gt_i32 vcc, {S_SEG}, {t0}
            {"s_cbranch_vccz L_QK_rel" if k < 3 else "s_cbranch_vccnz L_QK_spin"}
            """)
        g("L_QK_rel:\ns_barrier\ns_mov_b64 exec, -1")
        g("L_QK_go:")
        g.stamp(0)
        fb = g.opt.get("fb", "pv1")
        vmload = (f"buffer_load_dwordx2 {P2(VM)}, {self.vvm}, {WS}, {S_VM} offen sc1\n"
                  f"buffer_load_dwordx2 {P2(VM + 2)}, {self.vvm}, {WS}, s35 offen sc1")
        vmchk = (f"v_max3_u32 {self.vchk}, v{VM}, v{VM + 1}, v{VM + 2}\nv_max_u32 {self.vchk}, {self.vchk}, v{VM + 3}\n"
                 f"v_cmp_eq_u32 vcc, -1, {self.vchk}")
        KX = [S, S + 8, S + 16, RM]
        kx = lambda a: [f"ds_read_b128 {P4(KX[a] + 4 * kt)}, {self.vst[a]} offset:{16384 + kt * 1024}" for kt in range(2)]
        ring = [VX, VX + 4, RM, RM + 4, A, A + 4, A + 8, A + 12] if g.opt.get("qw", 8) == 8 else [A, A + 4, A + 8, A + 12, RM, RM + 4]
        QW = len(ring)

        def load(j):
            a, b = POS[j]
            return f"buffer_load_dwordx4 {P4(ring[j % QW])}, {v16}, {WS}, s{(92 if b < 2 else 96) + a} offen offset:{(b & 1) * 2048} sc1"

        def smfs(j):
            return [f"v_smfmac_f32_16x16x64_bf16 {P4(acc + 4 * t)}, {P4(ring[j % QW])}, "
                    f"{R('v', S + 8 * (j & 3), 8) if t == 3 else self.wt(t, j)}, {self.vidx}" for t in self.order]

        def lds(j):
            vx = [(f"ds_read_b128 {P4(VX + 4 * (j - 11))}, {self.vst[0]} offset:{2048 + (j - 11) * 1024}", -1)] if j in (11, 12) else []
            if j == 0: return [(f"s_cmp_eq_u32 {S_WAVE}, 0\ns_cbranch_scc1 L_QK_sig\nL_QK_sigd:", None)]
            if j < 13: return [(r, j + 3) for r in self.sread(j + 3)] + vx
            return [(r, -1) for r in {13: kx(3) + kx(0), 14: kx(1), 15: kx(2)}[j]]
        self.first_stamp = 1
        verdict, cold = self.stream("QKM", ring, load, smfs, lds, bits(g.opt.get("qm", "xffff")), g.opt.get("qs", 2),
                                    lambda: (self.pre_project(), g("s_waitcnt lgkmcnt(0)")), ctr="s60", first=g.opt.get("qf", 6))
        vmld = g.opt.get("vmld", "sc1")
        points = ["proj", "xch", "sc1", "sc2", "score", "max", "exp", "exp2", "cvt", "pv1", "pv", "rcp", "pub"]
        after_vm = 1 if points.index("exp") > points.index(fb) >= points.index(vmld) else 0

        def point(name):
            if vmld == name: g(vmload)
            if fb == name: g("\n".join(self.send()))
        g.stamp(2)
        point("proj")
        T16 = self.pt
        for T in range(2):
            for t in (T, 2 + T):
                g(f"v_pk_add_f32 {P2(acc + 4 * t)}, {P2(acc + 4 * t)}, {P2(acc + 4 * t + 2)}")
            if T == 0: g(f"v_cmp_u_f32 vcc, v{acc}, v{acc + 1}")
            for j, t in ((1, T), (0, 2 + T)):
                g(f"v_cvt_pk_bf16_f32 v{T16 + 2 * T + j}, v{acc + 4 * t}, v{acc + 4 * t + 1}")
        fread = lambda a: "\n".join(f"ds_read_b64_tr_b16 {P2(A + 4 * a + 2 * T)}, {vtr[a]} offset:{8 * T}" for T in range(2))
        g(f"""
        ds_write_b128 {vtw}, {P4(T16)}
        {fread(0)}
        {verdict}
        s_waitcnt lgkmcnt(2)
        s_barrier
        {fread(1)}
        {fread(2)}
        {fread(3)}
        """)
        point("xch")
        S0, S1, SM = acc, acc + 4, acc + 8
        for a in range(4):
            g(f"s_waitcnt lgkmcnt({6 - 2 * a})")
            for d, x in ((S0, KX[a]), (S1, KX[a] + 4), (SM, A + 4 * a)):
                g(f"v_mfma_f32_16x16x32_bf16 {P4(d)}, {P4(x)}, {P4(A + 4 * a)}, {P4(d) if a else '0'}")
            if a == 0: point("sc1")
            if a == 1: point("sc2")
        g.stamp(3)
        point("score")
        m = acc + 12
        g(f"""
        v_max3_f32 v{m}, v{S0}, v{S0 + 1}, v{S0 + 2}
        v_max3_f32 v{m + 1}, v{S0 + 3}, v{S0 + 4}, v{S0 + 5}
        v_max3_f32 v{m}, v{m}, v{S0 + 6}, v{S0 + 7}
        v_max3_f32 v{m + 1}, v{m + 1}, v{S0 + 8}, v{S0 + 9}
        v_max_f32 v{m + 2}, v{m}, v{m + 1}
        v_max_f32 v{m + 3}, v{m}, v{m + 1}
        v_permlane16_swap_b32 v{m + 2}, v{m + 3}
        v_max_f32 v{m}, v{m + 2}, v{m + 3}
        v_max_f32 v{m + 1}, v{m + 2}, v{m + 3}
        v_permlane32_swap_b32 v{m}, v{m + 1}
        v_max_f32 v{m}, v{m}, v{m + 1}
        """)
        point("max")
        fma = lambda r: f"v_pk_fma_f32 {P2(r)}, {P2(r)}, s[38:39], {P2(m)} op_sel_hi:[1,1,0] neg_lo:[0,0,1] neg_hi:[0,0,1]"
        ex = lambda r: f"v_exp_f32 v{r}, v{r}\nv_exp_f32 v{r + 1}, v{r + 1}"
        PX, O, L, OUT = self.pt, S + 24, acc + 12, acc
        cv = lambda k: f"v_cvt_pk_bf16_f32 v{PX + k}, v{S0 + 2 * k}, v{S0 + 2 * k + 1}"
        g(f"""
        v_mul_f32 v{m}, s38, v{m}
        {fma(SM)}
        {fma(S0)}
        {ex(SM)}
        {fma(S0 + 2)}
        {fma(S1)}
        {fma(S1 + 2)}
        v_cvt_pk_bf16_f32 v{PA}, v{SM}, v{SM + 1}
        v_cvt_pk_bf16_f32 v{PB + 1}, v{SM}, v{SM + 1}
        s_waitcnt vmcnt({after_vm})
        {vmchk}
        v_mfma_f32_16x16x32_bf16 {P4(L)}, {P4(ONE)}, {P4(PA)}, 0
        {ex(S0)}
        s_cbranch_vccnz L_QK_vbad
        L_QK_vok:
        """)
        point("exp")
        g(f"""
        v_mfma_f32_16x16x32_bf16 {P4(O)}, {P4(VM)}, {P4(PA)}, 0
        {ex(S0 + 2)}
        v_mfma_f32_16x16x32_bf16 {P4(O + 4)}, {P4(VM)}, {P4(PB)}, 0
        {ex(S1)}
        {self.send()[0] if fb == "exp2" else ""}
        {cv(0)}
        {ex(S1 + 2)}
        {cv(1)}
        {cv(2)}
        {cv(3)}
        """)
        point("cvt")
        g(f"""
        v_mfma_f32_16x16x32_bf16 {P4(L)}, {P4(ONE)}, {P4(PX)}, {P4(L)}
        {self.send()[0] if fb == "pv1" else ""}
        v_mfma_f32_16x16x32_bf16 {P4(O)}, {P4(VX)}, {P4(PX)}, {P4(O)}
        v_mfma_f32_16x16x32_bf16 {P4(O + 4)}, {P4(VX + 4)}, {P4(PX)}, {P4(O + 4)}
        """)
        point("pv")
        g(f"v_rcp_f32 v{L}, v{L}")
        point("rcp")
        for k in range(4):
            g(f"v_pk_mul_f32 {P2(O + 2 * k)}, {P2(O + 2 * k)}, {P2(L)} op_sel_hi:[1,0]")
        for k in range(4): g(f"v_cvt_pk_bf16_f32 v{OUT + k}, v{O + 2 * k}, v{O + 2 * k + 1}")
        g.stamp(4)
        g(f"buffer_store_dwordx4 {P4(OUT)}, {vopub}, {WS}, s48 offen")
        point("pub")
        Q, VP = [S + 24, S + 28, S, S + 8], [S + 4, S + 12]
        qread = lambda a: f"ds_read_b128 {P4(Q[a])}, {self.vst[a]} offset:{(a & 1) * 1024}"
        T0, T1, TM = acc + 4, acc + 8, acc + 12
        g(f"""
        {qread(0)}
        {qread(1)}
        s_add_u32 s32, s32, {TSEG}
        s_xor_b32 s32, s32, 0x2000
        s_add_u32 s33, {S_SEG}, 2
        s_min_u32 s33, s33, {NSEG}
        s_waitcnt lgkmcnt(0)
        buffer_store_dwordx4 {P4(OUT)}, {vopub}, {WS}, {S_O} offen sc1
        """)
        for a in range(4):
            if a > 1: g(f"s_waitcnt lgkmcnt({3 if a == 2 else 0})")
            if g.opt.get("pearly") == a: g("\n".join(self.both("buffer_store_dwordx4", P4(self.ones), vopub, "s34")))
            for d, x in ((T0, KX[a]), (T1, KX[a] + 4), (TM, A + 4 * a)):
                g(f"v_mfma_f32_16x16x32_bf16 {P4(d)}, {P4(x)}, {P4(Q[a])}, {P4(d) if a else '0'}")
            if a < 2: g(f"{qread(a + 2)}\nds_read_b128 {P4(VP[a])}, {self.vst[1]} offset:{2048 + a * 1024}")
            if a == g.opt.get("touch", 15): g(f"buffer_load_dword {self.vchk}, {self.vmr}, {WS}, {S_O} offen sc1")
        ready()
        g.stamp(5)
        FF, M, PXT = self.ones, RM + 4, S + 16
        if g.opt.get("nofetch"): fetch = fetch[:6 - 2 * g.opt["nofetch"]]
        flate = g.opt.get("flate", 0)
        vm_ops = [] if flate else list(fetch)
        if g.opt.get("touch", 15) >= 10:
            vm_ops = [""] * (g.opt.get("touch", 15) - 10) + [f"buffer_load_dword {self.vchk}, {self.vmr}, {WS}, {S_O} offen sc1"] + vm_ops
        if "pearly" not in g.opt: vm_ops += self.both("buffer_store_dwordx4", P4(FF), vopub, "s34")
        valu = [f"v_cndmask_b32 v{T0 + k}, {NEG}, v{T0 + k}, {MASK[k]}" for k in range(8)]
        valu += [f"v_max3_f32 v{M}, v{T0}, v{T0 + 1}, v{T0 + 2}", f"v_max3_f32 v{M + 1}, v{T0 + 3}, v{T0 + 4}, v{T0 + 5}",
                 f"v_max3_f32 v{M}, v{M}, v{T0 + 6}, v{T0 + 7}", f"v_max3_f32 v{M + 1}, v{M + 1}, v{T0 + 8}, v{T0 + 9}",
                 f"v_max_f32 v{M + 2}, v{M}, v{M + 1}", f"v_max_f32 v{M + 3}, v{M}, v{M + 1}",
                 f"v_permlane16_swap_b32 v{M + 2}, v{M + 3}",
                 f"v_max_f32 v{M}, v{M + 2}, v{M + 3}", f"v_max_f32 v{M + 1}, v{M + 2}, v{M + 3}",
                 f"v_permlane32_swap_b32 v{M}, v{M + 1}", f"v_max_f32 v{M}, v{M}, v{M + 1}", f"v_mul_f32 v{M}, s38, v{M}"]
        valu += [f"v_pk_fma_f32 {P2(T0 + 2 * k)}, {P2(T0 + 2 * k)}, s[38:39], {P2(M)} op_sel_hi:[1,1,0] neg_lo:[0,0,1] neg_hi:[0,0,1]" for k in range(5)]
        valu += [f"v_exp_f32 v{T0 + k}, v{T0 + k}" for k in range(10)]
        valu += [f"v_cvt_pk_bf16_f32 v{PXT + k}, v{T0 + 2 * k}, v{T0 + 2 * k + 1}" for k in range(4)]
        valu += [f"v_cvt_pk_bf16_f32 v{d}, v{TM}, v{TM + 1}" for d in (PA, PB + 1)]
        gap = g.opt.get("hkgap", 2)
        for i, ins in enumerate(valu):
            if i % gap == 0 and vm_ops: g(vm_ops.pop(0))
            g(ins)
        for op in vm_ops: g(op)
        if not g.opt.get("inner"): g.stamp(7)
        LT = S + 20
        g(f"s_add_u32 {S_SEG}, {S_SEG}, 1\ns_xor_b32 s41, s30, 2048")
        salu, fl = list(bases), list(fetch)
        mm = [(LT, ONE, PXT, 0)] + [(acc + 4 * k, x, PXT, 0) for k, x in enumerate((VX, VX + 4, VP[0], VP[1]))]
        mm += [(LT, ONE, PA, 1)] + [(acc + 4 * k, VM, p, 1) for k, p in enumerate((PA, PB, PC, PD))]
        for d, x, y, c in mm:
            g(f"v_mfma_f32_16x16x32_bf16 {P4(d)}, {P4(x)}, {P4(y)}, {P4(d) if c else '0'}")
            if flate == 1 and fl: g(fl.pop(0))
            for _ in range(3):
                if salu: g(salu.pop(0))
        g("\n".join(salu + [f"v_rcp_f32 v{LT}, v{LT}"]))
        for h, so in enumerate(("s30", "s41")):
            for k in range(4 * h, 4 * h + 4): g(f"v_pk_mul_f32 {P2(acc + 2 * k)}, {P2(acc + 2 * k)}, {P2(LT)} op_sel_hi:[1,0]")
            for k in range(4 * h, 4 * h + 4): g(f"v_cvt_pk_bf16_f32 v{A + k}, v{acc + 2 * k}, v{acc + 2 * k + 1}")
            g(f"buffer_store_dwordx4 {P4(A + 4 * h)}, {v16}, {WS}, {so} offen sc1")
        g(f"s_add_u32 s30, s30, {TSEG}\ns_xor_b32 s30, s30, 0x2000")
        if flate == 2: g("\n".join(fetch))
        if not g.opt.get("inner"): g.stamp(8)
        g.trace_flush(S + 24, drain=False, back=1)
        g.flush()
        g(f"""
        s_branch L_QK_top
        ;@end
        L_QK_park:
        s_waitcnt vmcnt(0)
        s_cmp_lt_u32 {S_SEG}, {NSEG}
        s_cbranch_scc1 L_QK_rel
        s_barrier
        """)
        g.signal("s62", S_SEG, 0)
        g.dbg_time(8, t0, t1)
        self.report(10)
        g("s_branch L_END")
        cold()
        g(";@pad L_QK_sig\nL_QK_sig:")
        g.signal("s62", S_SEG)
        g("s_branch L_QK_sigd\nL_QK_vbad:")
        g.budget()
        g(f"""
        s_add_u32 s61, s61, 1
        {vmload}
        s_waitcnt vmcnt(0)
        {vmchk}
        s_cbranch_vccnz L_QK_vbad
        s_branch L_QK_vok
        """)


class VO(Rec):
    role, nt, order, send_off = 1, 2, (0, 1), 0

    def wt(self, t, pos, n=8, p=0):
        return R("v", 128 + pos * 8 + 2 * p, n)

    def wo(self, pos, T, n=8, p=0):
        return R("a", (2 * pos + T) * 8 + 2 * p, n)

    def emit(self):
        g, v = self.g, self.v
        A, S, acc, RM = self.A, self.S, self.acc, self.RM
        W = g.opt.get("owin", 7)
        extra = v.get(4 * (W - 6), 4) if W > 6 else 0
        ring = [A, A + 4, A + 8, A + 12, RM, RM + 4] + [extra + 4 * k for k in range(W - 6)]
        T4 = v.get(8, 4)
        vrw, vrr, vmpub = (f"v{v.get()}" for _ in range(3))
        vo = [f"v{v.get()}" for _ in range(4)]
        t0, t1, t2 = f"v{self.pt}", f"v{self.pt + 1}", f"v{self.pt + 2}"
        g("L_VO:")
        vl = self.addr_setup()
        g(f"s_lshl_b32 s44, {S_IDX}, 8\ns_add_u32 s45, s44, 128")
        g.srd(WW, K_WV, 8 << 20)
        self.sparse_loader([self.mem_round(vl, "s44", lambda pos, p: self.wt(0, pos, 2, p)), self.mem_round(vl, "s45", None)])
        g(f"s_lshr_b32 s40, {S_IDX}, 1\ns_lshl_b32 s40, s40, 2")
        g.flag_addr(t0, FL_WOF, 4, "s40")
        g.poll(t0, "1", t1, sleep=1)
        g(f"""
        s_lshl_b32 s40, {S_IDX}, 18
        s_lshl_b32 s41, {S_WAVE}, 15
        s_add_u32 s40, s40, s41
        v_lshl_add_u32 {t0}, {LANE}, 4, s40
        s_add_u32 s50, {S_IDX}, {S_WAVE}
        s_and_b32 s50, s50, {g.opt.get('rot', 3)}
        s_lshl_b32 s41, s54, 5
        s_add_u32 s41, s41, s50
        s_lshl_b32 s41, s41, 12
        """)
        for pos in range(16):
            g(f"s_xor_b32 s40, s41, {((pos >> 3) << 17) + (pos & 7) * 4096}\ns_add_u32 s40, s40, {WOF}")
            for k in range(4):
                g(f"buffer_load_dwordx4 {R('a', pos * 16 + 4 * k, 4)}, {t0}, {WS}, s40 offen offset:{k * 1024} sc1")
            if pos >= 8: g("s_waitcnt vmcnt(32)")
        g.dbg_time(7, t0, t1)
        g.tlb_warm(t1, t2)
        self.common_setup()
        va, vn = f"v{A}", f"v{A + 1}"
        allw = g.opt.get("fa", "red") not in ("bar", "pub")
        g(f"""
        s_mul_i32 s40, {S_WAVE}, {CH}
        s_and_b32 s41, s50, 3
        s_lshl_b32 s41, s41, 10
        s_add_u32 s40, s40, s41
        v_lshl_add_u32 {vo[0]}, {LANE}, 4, s40
        v_xor_b32 {vo[1]}, 0x400, {vo[0]}
        v_xor_b32 {vo[2]}, 0x800, {vo[0]}
        v_xor_b32 {vo[3]}, 0xc00, {vo[0]}
        s_mul_i32 s58, s54, {4 * CH}
        s_and_b32 s41, s50, 4
        s_lshl_b32 s41, s41, 10
        s_add_u32 s58, s58, s41
        s_bfe_u32 s40, {S_IDX}, 0x20002
        s_lshl_b32 s40, s40, 7
        s_and_b32 s41, {S_IDX}, 3
        s_lshl_b32 s41, s41, {4 if allw else 2}
        s_add_u32 s40, s40, s41
        s_lshl_b32 s41, {S_WAVE}, 2
        s_add_u32 s41, s41, s40
        s_cmp_eq_u32 {S_WAVE}, 0
        s_cselect_b32 s40, s40, {"s41" if allw else OOB}
        s_mov_b64 exec, 1
        v_mov_b32 {self.vsnd}, s40
        s_mov_b64 exec, -1
        s_mul_i32 s40, {S_WAVE}, {512 if g.opt.get("own", 1) else 0}
        v_add_u32 {self.vtrig}, s40, {self.vtrig}
        s_lshl_b32 s40, {S_WAVE}, 10
        s_add_u32 s40, s40, {STAGE + 16384}
        v_lshl_add_u32 {vrw}, {LANE}, 4, s40
        s_and_b32 s40, {S_WAVE}, 1
        s_lshl_b32 s40, s40, 3
        v_bfe_u32 {va}, {LANE}, 2, 3
        v_add_u32 {va}, s40, {va}
        s_lshr_b32 s40, {S_WAVE}, 1
        s_lshl_b32 s40, s40, 3
        v_and_b32 {vn}, 3, {LANE}
        v_add_u32 {vn}, s40, {vn}
        v_bfe_u32 {t0}, {va}, 1, 1
        v_lshl_add_u32 {vn}, {t0}, 2, {vn}
        v_lshrrev_b32 {t0}, 2, {va}
        v_and_b32 {t1}, 1, {va}
        v_lshl_add_u32 {t2}, {t0}, 4, {vn}
        v_lshlrev_b32 {t2}, 4, {t2}
        v_lshl_add_u32 {t2}, {t1}, 3, {t2}
        v_add_u32 {vrr}, {STAGE + 16384}, {t2}
        s_bfe_u32 s41, {S_IDX}, 0x10002
        s_mul_i32 s41, s41, {CH}
        s_lshr_b32 s40, {S_IDX}, 3
        s_lshl_b32 s40, s40, 11
        s_add_u32 s40, s40, s41
        s_and_b32 s41, {S_IDX}, 3
        s_lshl_b32 s41, s41, 9
        s_add_u32 s40, s40, s41
        s_lshl_b32 s41, {S_WAVE}, 7
        s_add_u32 s40, s40, s41
        v_lshl_add_u32 {vmpub}, {LANE}, 2, s40
        s_mov_b32 exec_lo, 0
        v_mov_b32 {vmpub}, {OOB}
        s_mov_b64 exec, -1
        """)
        self.warm_rings([(self.vvm, S_VM, 0), (vmpub, S_MEM, LOCX)])
        self.pre_project()
        g.flush()
        g.phase("pv")
        g(";@hot\nL_VO_top:")
        g("\n".join(self.step_bases()))
        if g.opt.get("vdelay", 4): g(f"s_sleep {g.opt.get('vdelay', 4)}")
        g.stamp(0)
        self.project("VO", {})
        g.stamp(2)
        for T in range(2): g(f"v_pk_add_f32 {P2(acc + 4 * T)}, {P2(acc + 4 * T)}, {P2(acc + 4 * T + 2)}")
        for T in range(2): g(f"v_cvt_pk_bf16_f32 v{T4 + T}, v{acc + 4 * T}, v{acc + 4 * T + 1}")
        oa = acc + 8
        g(self.same_side("buffer_store_dwordx2", P2(T4), self.vvm, S_VM))
        g(f"""
        s_cmp_ge_u32 {S_SEG}, {NSEG - 1}
        s_cbranch_scc1 L_VO_end
        s_add_u32 s42, {S_O}, s58
        s_xor_b32 s30, s42, {S_LX}
        s_xor_b32 s31, s30, 4096
        s_xor_b32 s32, s42, {4 * CH}
        s_xor_b32 s48, s32, 4096
        s_add_u32 s41, {S_SEG}, 1
        v_mov_b32 {self.vstep}, s41
        s_and_b32 s41, s41, 3
        s_lshl_b32 s41, s41, 16
        s_add_u32 s33, s41, {S_SEL}
        s_add_u32 s33, s33, {MEM_RING}
        s_xor_b32 s49, s33, {LOCX}
        s_xor_b32 s34, s33, 0x20000
        s_xor_b32 s35, {S_VM}, 0x84000
        """)
        g("\n".join(self.both("buffer_store_dword", f"v{self.ones}", vmpub, "s34")))
        g(self.same_side("buffer_store_dwordx2", P2(self.ones), self.vvm, "s35"))
        g.trace_flush(T4 + 4, drain=False)
        for i in range(0, 8, 2): g(f"v_mov_b64 {P2(oa + i)}, 0")
        self.pre_project()
        self.trigger(2048, g.opt.get("own", 1))
        g.stamp(3)
        load = lambda j: f"buffer_load_dwordx4 {P4(ring[j % W])}, {vo[j & 3]}, {WS}, {('s30', 's31', 's32', 's48')[j >> 2]} offen sc1"
        smf = lambda j, T: f"v_smfmac_f32_16x16x64_bf16 {P4(oa + 4 * T)}, {P4(ring[j % W])}, {self.wo(j, T)}, {self.vidx}"
        fa = g.opt.get("fa", "red")
        self.first_stamp = 4
        lst = lambda k, d: [int(x) for x in str(g.opt.get(k, d)).split("_") if x != "n"]
        zero = lambda: [g(f"v_mov_b64 {P2(oa + i)}, 0") for i in range(0, 8, 2)]
        verdict, cold = self.stream("VOO", ring, load, lambda j: [smf(j, 0), smf(j, 1)], lambda j: [],
                                    bits(g.opt.get("om", "xffff")), 1, zero, {fa: self.send()}, first=g.opt.get("of", 6))
        g.stamp(5)
        if fa == "end": g("\n".join(self.send()))
        g(f"""
        v_add_f32 v{T4}, v{oa}, v{oa + 2}
        v_add_f32 v{T4 + 2}, v{oa + 1}, v{oa + 3}
        v_add_f32 v{T4 + 1}, v{oa + 4}, v{oa + 6}
        v_add_f32 v{T4 + 3}, v{oa + 5}, v{oa + 7}
        ds_write_b128 {vrw}, {P4(T4)}
        v_cmp_u_f32 vcc, v{T4}, v{T4 + 2}
        {verdict}
        """)
        if fa == "red": g("\n".join(self.send()))
        g(f"""
        s_waitcnt lgkmcnt(0)
        s_barrier
        """)
        rd = g.opt.get("rd", 0)
        if rd == 1: g("s_mov_b32 exec_hi, 0")
        if rd < 2:
            g(f"ds_read2st64_b64 {P4(T4)}, {vrr} offset0:0 offset1:2\nds_read2st64_b64 {P4(T4 + 4)}, {vrr} offset0:4 offset1:6")
        else:
            for k in range(4): g(f"ds_read_b64 {P2(T4 + 2 * k)}, {vrr} offset:{k * 1024}")
        if fa == "bar": g("\n".join(self.send()))
        g(f"""
        s_waitcnt lgkmcnt({1 if rd < 2 else 2})
        v_pk_add_f32 {P2(T4)}, {P2(T4)}, {P2(T4 + 2)}
        s_waitcnt lgkmcnt(0)
        v_pk_add_f32 {P2(T4 + 4)}, {P2(T4 + 4)}, {P2(T4 + 6)}
        v_pk_add_f32 {P2(T4)}, {P2(T4)}, {P2(T4 + 4)}
        v_cvt_pk_bf16_f32 v{T4}, v{T4}, v{T4 + 1}
        """)
        g.stamp(6)
        g(f"""
        buffer_store_dword v{T4}, {vmpub}, {WS}, s49 offen
        {f"s_sleep {g.opt['mlate']}" if g.opt.get("mlate") else ""}
        buffer_store_dword v{T4}, {vmpub}, {WS}, s33 offen sc1
        """)
        if fa == "pub": g("\n".join(self.send()))
        if rd == 1: g("s_mov_b64 exec, -1")
        g(f"s_add_u32 {S_SEG}, {S_SEG}, 1")
        g.flush()
        g("s_branch L_VO_top\n;@end\nL_VO_end:")
        self.report(12)
        g("s_branch L_END")
        self.bad_stubs("VO")
        cold()


def emit_wof(g):
    g("L_WOF:")
    g.srd(WW, K_WO, 8 << 20)
    g.src_lane("v1", "v2", 2048, 64, r1=4, r0=1)
    g.tr_lane("v4", "v2", "0")
    g(f"""
    s_and_b32 s43, {S_IDX}, 3
    s_lshl_b32 s43, s43, 2
    s_add_u32 s43, s43, {S_WAVE}
    s_lshr_b32 s44, {S_IDX}, 2
    s_lshl_b32 s40, s43, 19
    s_lshl_b32 s41, s44, 7
    s_add_u32 s40, s40, s41
    v_add_u32 v1, s40, v1
    s_lshl_b32 s41, {S_WAVE}, 15
    v_add_u32 v4, s41, v4
    s_lshl_b32 s40, s44, 19
    s_lshl_b32 s45, s43, 14
    s_add_u32 s40, s40, s45
    v_lshl_add_u32 v3, {LANE}, 4, s40
    """)
    for k in range(1, 4): g(f"v_xor_b32 v{4 + k}, {k << 5}, v4")
    for f in range(4):
        for p in range(4):
            for hi in range(2):
                g(f"""
                s_add_u32 m0, s41, {f * 8192 + p * 2048 + hi * 1024}
                s_mov_b32 s42, {(128 * (f >> 1) + 32 * (f & 1) + 16 * (p >> 1) + 2 * (p & 1) + 8 * hi) * 2048}
                buffer_load_dwordx4 v1, {WW}, s42 offen nt lds
                """)
    for f in range(4):
        g(f"s_waitcnt vmcnt(24)")
        for sl in range(4):
            for p in range(4):
                g(f"ds_read_b64_tr_b16 {P2(8 + 32 * f + 8 * sl + 2 * p)}, v{4 + sl} offset:{f * 8192 + p * 2048}")
        for sl in range(4):
            g(f"s_mov_b32 s42, {WOF + (sl >> 1) * 262144 + f * 4096}\ns_waitcnt lgkmcnt({12 - 4 * sl})")
            for h in range(2):
                g(f"buffer_store_dwordx4 {P4(8 + 32 * f + 8 * sl + 4 * h)}, v3, {WS}, s42 offen offset:{(sl & 1) * 2048 + h * 1024} sc1")
    g.wait_init("v1", "v2")
    g(f"s_barrier\ns_lshl_b32 s40, {S_IDX}, 7\ns_add_u32 s40, s40, {FL_WOF}")
    g.signal("s40", "1", 0)
    g("s_branch L_LN1")
```

```python
import sys
from common import *
import gstage, light, rec
from place import place


def build(opt):
    g = Gen(opt)
    ref = open(f"/code/{NAME}.s.ref").read().split("\n")
    for l in ref:
        if l.startswith("; Override"): break
        g.raw(l)
    g.raw(f"; @launch grid=(256,1,1) block=(256,1,1) lds={LDS_BYTES}")
    g.raw('.amdgcn_target "amdgcn-amd-amdhsa--gfx950"\n.text')
    g.raw(f".globl {NAME}_kernel\n.p2align 8\n.type {NAME}_kernel,@function\n{NAME}_kernel:")
    g(f"""
    s_cmp_ge_u32 s2, 256
    s_cbranch_scc1 L_END
    s_load_dwordx2 s[4:5], s[0:1], {K_WS}
    s_load_dwordx2 s[12:13], s[0:1], {K_DBG}
    v_lshrrev_b32 v1, 6, v0
    v_and_b32 v0, 63, v0
    v_readfirstlane_b32 {S_WAVE}, v1
    s_mov_b32 s6, {WS_SIZE}
    s_mov_b32 s7, 0x20000
    s_mov_b32 s14, 256
    s_mov_b32 s15, 0x20000
    s_mov_b32 {S_TMO}, {BUDGET}
    s_and_b32 s40, s2, 7
    """)
    role, job = layout(opt.get("lay", 2))
    pk = lambda row: hex(sum(v << (8 * o) for o, v in enumerate(row)))
    g(f"s_mov_b32 s42, {pk(role[0])}\ns_mov_b32 s43, {pk(job[0])}")
    for x in range(1, 8):
        g(f"s_cmp_eq_u32 s40, {x}\ns_cselect_b32 s42, {pk(role[x])}, s42\ns_cselect_b32 s43, {pk(job[x])}, s43")
    g(f"""
    s_lshr_b32 s40, s2, 6
    s_lshl_b32 s40, s40, 3
    s_lshr_b32 s42, s42, s40
    s_lshr_b32 s43, s43, s40
    s_bfe_u32 s41, s2, 0x30003
    s_and_b32 s42, s42, 31
    s_lshl_b32 s42, s42, 3
    s_add_u32 s3, s42, s41
    s_bfe_u32 {S_X}, s43, 0x30002
    s_and_b32 s43, s43, 3
    s_lshl_b32 s43, s43, 3
    s_add_u32 {S_R}, s43, s41
    s_waitcnt lgkmcnt(0)
    s_add_u32 s4, s4, {WS_SKIP + 0x1fffff}
    s_addc_u32 s5, s5, 0
    s_and_b32 s4, s4, 0xffe00000
    """)
    g.dbg_time(0, "v1", "v2")
    if opt.get("ipre", 1):
        g(f"""
        s_cmp_lg_u32 {S_WAVE}, 3
        s_cbranch_scc1 L_NOPRE
        s_getpc_b64 s[40:41]
        L_PC:
        s_lshr_b32 s42, s2, 3
        v_lshlrev_b32 v1, 12, {LANE}
        s_lshl_b32 s42, s42, 7
        v_add_u32 v1, s42, v1
        v_min_u32 v1, L_LAST-L_PC, v1
        global_load_dword v255, v1, s[40:41]
        L_NOPRE:
        """)
    g(f"""
    s_cmp_ge_u32 {S_X}, 4
    s_cbranch_scc1 L_TRAIL
    s_lshr_b32 s40, {S_X}, 1
    s_bitcmp1_b32 {S_X}, 0
    s_cbranch_scc0 L_REC
    s_lshl_b32 s40, s40, 5
    s_add_u32 {S_IDX}, s40, {S_R}
    s_branch L_QKV
    L_REC:
    s_lshl_b32 s40, s40, 4
    s_lshr_b32 s41, {S_R}, 1
    s_add_u32 {S_IDX}, s40, s41
    s_bitcmp1_b32 {S_R}, 0
    s_cbranch_scc1 L_VO
    s_branch L_QK
    L_TRAIL:
    s_mov_b32 {S_IDX}, {S_R}
    s_cmp_eq_u32 {S_X}, 6
    s_cbranch_scc1 L_MOD
    s_sub_u32 s40, {S_X}, 4
    s_lshl_b32 s40, s40, 5
    s_add_u32 {S_IDX}, s40, {S_R}
    s_cmp_lg_u32 {S_X}, 7
    s_cbranch_scc1 L_WOF
    """)
    light.emit_init(g)
    light.emit_mod(g)
    light.emit_ln1(g)
    g.tlb_warm("v1", "v2")
    gates = {0: (None, None), 1: (FL_QKV, FL_QKV), 2: (FL_QK, FL_QK), 3: (FL_QK, FL_QKV), 4: (FL_TAB, FL_QKV), 5: (FL_TAB, FL_TAB)}[opt.get("gate", 2)]
    if gates[0]:
        g(f"s_mov_b32 s40, {gates[1]}\ns_cmp_lt_u32 {S_X}, 6\ns_cselect_b32 s40, {gates[0]}, s40\nv_mov_b32 v1, s40")
        g.poll("v1", "0", "v2", sleep=8)
    g(f"""
    s_sub_u32 s40, {S_X}, 3
    s_lshl_b32 s40, s40, 5
    s_add_u32 {S_IDX}, s40, {S_R}
    s_cmp_lt_u32 {S_X}, 6
    s_cbranch_scc1 L_MOD
    L_ROLE:
    s_sub_u32 {S_IDX}, s3, 128
    s_cmp_lt_u32 s3, 160
    s_cbranch_scc1 L_WO
    s_sub_u32 {S_IDX}, s3, 160
    s_cmp_lt_u32 s3, 216
    s_cbranch_scc1 L_F1
    s_sub_u32 {S_IDX}, s3, 216
    s_cmp_lt_u32 s3, 224
    s_cbranch_scc1 L_LN2
    s_sub_u32 {S_IDX}, s3, 224
    s_cmp_lt_u32 s3, 248
    s_cbranch_scc1 L_F2
    s_sub_u32 {S_IDX}, s3, 248
    s_branch L_FIN
    L_FAIL:
    s_mov_b64 exec, -1
    s_lshl_b32 s40, s2, 8
    s_add_u32 s40, s40, {S_SEG}
    s_add_u32 s40, s40, 0x70000000
    v_mov_b32 v1, {15 * 4}
    v_mov_b32 v2, s40
    buffer_store_dword v2, v1, {DBG}, 0 offen
    L_END:
    s_endpgm
    """)
    light.emit_ln2(g)
    light.emit_fin(g)
    for cls in (gstage.QKV, gstage.WO, gstage.F1, gstage.F2):
        cls(g).emit()
    rec.emit_wof(g)
    rec.QK(g).emit()
    rec.VO(g).emit()
    g("L_LAST:\ns_endpgm")
    g.raw(f""".section .rodata,"a"
.p2align 6
.amdhsa_kernel {NAME}_kernel
  .amdhsa_next_free_vgpr 512
  .amdhsa_next_free_sgpr 102
  .amdhsa_accum_offset 256
  .amdhsa_group_segment_fixed_size 0
  .amdhsa_kernarg_size 128
  .amdhsa_user_sgpr_count 2
  .amdhsa_user_sgpr_kernarg_segment_ptr 1
  .amdhsa_system_sgpr_workgroup_id_x 1
  .amdhsa_float_denorm_mode_32 3
.end_amdhsa_kernel""")
    return place(g.text(), opt.get('lim', 24)) if opt.get('place', 1) else g.text()


if __name__ == "__main__":
    opt = {}
    out = f"/code/{NAME}.s"
    for a in sys.argv[1:]:
        k, _, v = a.partition("=")
        if k == "out": out = v
        else: opt[k] = int(v) if v.lstrip("-").isdigit() else v
    open(out, "w").write(build(opt))
    print("wrote", out)
```

```python
from asm import Asm, Regs, R

NAME = "adaLN_cond__memory_aug_recurrent_mem_tr__glu_gated_swiglu__prompt"
NSEG = 64
LAYOUTS = {
    0: ("RRRR", "Q Wi Wm Li", "RRRR", "Q Wi Wm Ni", "Q Q Fw Fw", "Q Fw Fw Dm", "Q Q Fw Fw", "Q Fw Dw Dm"),
    1: ("RRRR", "Wi Wi Wm Li", "RRRR", "Wi Dm Dm Nm", "Q Q Fw Fw", "Q Q Fw Fw", "Q Q Fw Fw", "Q Q Fw Dw"),
    2: ("RRRR", "Fm Fm Fm Lm", "RRRR", "Di Di Di Ni", "Q Q Q Q", "Ww Ww Ww Ww", "Q Q Q Q", "Fw Fw Fw Fw"),
    4: ("RRRR", "Ww Ww Fw Lw", "RRRR", "Ww Ww Fw Nw", "Q Q Fm Di", "Q Q Fm Di", "Q Q Fm Di", "Q Q Fm Fi"),
    5: ("RRRR", "Wi Wi Fm Lm", "RRRR", "Wi Wi Fm Nm", "Q Q Q Q", "Fw Fw Dw Dw", "Q Q Q Q", "Fw Fw Fw Dw"),
    6: ("RRRR", "Ww Ww Fw Lw", "RRRR", "Wi Wi Fi Ni", "Q Q Q Fm", "Q Q Q Fm", "Q Q Fm Dm", "Fw Fw Dw Dw"),
    7: ("RRRR", "Q Q Q Q", "RRRR", "Q Q Q Q", "Ww Ww Ww Ww", "Fw Fw Fw Fw", "Fm Fm Fm Lm", "Di Di Di Ni"),
    8: ("RRRR", "Q Q Wi Wi", "RRRR", "Q Q Wi Wi", "Q Q Q Q", "Fw Fw Fw Fw", "Fm Fm Fm Lm", "Dw Dw Dw Nw"),
    9: ("RRRR", "Q Q Q Q", "RRRR", "Wi Wi Wi Wi", "Q Q Q Q", "Fw Fw Fw Fw", "Fm Fm Fm Lm", "Dw Dw Dw Nw"),
    10: ("RRRR", "Fw Fw Fw Lw", "RRRR", "Dw Dw Dw Nw", "Q Q Q Q", "Wi Wi Wi Wi", "Q Q Q Q", "Fm Fm Fm Fm"),
    11: ("RRRR", "Fm Fm Fm Lm", "RRRR", "Dw Dw Dw Nw", "Q Q Q Q", "Wi Wi Wi Wi", "Q Q Q Q", "Fw Fw Fw Fw"),
    3: ("RRRR", "Q Wi Wi Lm", "RRRR", "Q Wi Wi Nm", "Q Q Fw Fw", "Q Fw Fw Dm", "Q Q Fw Fw", "Q Fw Dw Dm"),
}


def layout(k):
    free = {"Q": [4, 5, 6, 7, 12, 13, 14, 15], "W": [16, 17, 18, 19], "F": list(range(20, 27)), "L": [27], "D": [28, 29, 30],
            "N": [31], "w": list(range(16, 24)), "m": [24, 25, 26, 27], "i": [28, 29, 30, 31]}
    role, job = [], []
    for x, row in enumerate(LAYOUTS[k]):
        if row == "RRRR":
            role.append([4 * x + o for o in range(4)]); job.append(role[-1]); continue
        role.append([free[e[0]].pop(0) for e in row.split()])
        job.append([free[e[1]].pop(0) if len(e) > 1 else r for e, r in zip(row.split(), role[-1])])
    assert not any(free.values())
    return role, job


K_X, K_MEM0, K_WQ, K_WK, K_WV, K_WO, K_W1, K_W3, K_W2, K_C, K_WMOD, K_OUT, K_DBG, K_WS = (
    0, 8, 16, 24, 32, 40, 64, 72, 80, 88, 96, 104, 112, 120)

WS_SKIP = 4 << 20
CH = 0x8000
O_RING = 0x000000
TRIG = 0x140000
PROBE = TRIG + CH
LOCX = 0x2000
FLG = 0x150000
FL_MOD = FLG
FL_LN1 = FL_MOD + 96 * 128
FL_QKV = FL_LN1 + 64 * 128
FL_QK = FL_QKV + 64 * 128
FL_WO = FL_QK + 32 * 128
FL_LN2 = FL_WO + 32 * 128
FL_F1 = FL_LN2 + 8 * 128
FL_F2 = FL_F1 + 56 * 128
FL_TAB = FL_F2 + 24 * 128
FL_WOF = FL_TAB + 64 * 128
assert FL_WOF + 64 * 128 <= 0x180000
MOD = 0x180000
MEMS = 0x200000
LOCM = 0x4000
H1 = 0x600000
WOF = 0xA00000
TOK = 0x1400000
TSEG, THEAD, TPART = 1 << 21, 1 << 16, 1 << 14
PWO = 0
PF2 = 32 * TPART
H2 = 56 * TPART
X1 = 64 * TPART
ACT = 72 * TPART
TRACE = 0x9800000
TIMES = 0x9C00000
WS_SIZE = 0x9C08000

OOB = 0x7FFFFF00
LDS_BYTES = 163840
BUDGET = 300000

WS, WW, DBG, XS = "s[4:7]", "s[8:11]", "s[12:15]", "s[16:19]"
S_WAVE, S_IDX, S_X, S_R, S_TMO, S_SEG = "s20", "s21", "s22", "s23", "s24", "s25"
LANE = "v0"
DBG_SEL, DBG_INIT = 16 * 4, 32 * 4


class Gen(Asm):
    def __init__(self, opt):
        super().__init__()
        self.opt = opt
        self.uid = 0

    def lab(self, base):
        self.uid += 1
        return f"L{base}_{self.uid}"

    def phase(self, key):
        if key not in self.opt: return
        l = self.lab("ph")
        self.flush()
        self(f"s_branch {l}")
        self.raw(".p2align 6")
        self.raw(f".fill {self.opt[key]}, 4, 0xbf800000")
        self(f"{l}:")

    def srd(self, which, karg, size):
        b = int(which[2:which.index(":")])
        self(f"""
        s_load_dwordx2 s[{b}:{b + 1}], s[0:1], {karg}
        s_mov_b32 s{b + 2}, {size}
        s_mov_b32 s{b + 3}, 0x20000
        s_waitcnt lgkmcnt(0)
        """)

    def budget(self):
        self(f"""
        s_sub_u32 {S_TMO}, {S_TMO}, 1
        s_cbranch_scc1 L_FAIL
        """)

    def poll(self, vaddr, thr, vt, srd=WS, soff="0", sleep=2):
        top, done = self.lab("poll"), self.lab("polld")
        self.flush()
        self(f"""
        {top}:
        buffer_load_dword {vt}, {vaddr}, {srd}, {soff} offen sc1
        """)
        self.budget()
        self(f"""
        s_waitcnt vmcnt(0)
        v_cmp_gt_i32 vcc, {thr}, {vt}
        s_cbranch_vccz {done}
        s_sleep {sleep}
        s_branch {top}
        {done}:
        """)

    def signal(self, soff, val, wave=None):
        skip = self.lab("nosig")
        if wave is not None: self(f"s_cmp_lg_u32 {S_WAVE}, {wave}\ns_cbranch_scc1 {skip}")
        self(f"s_mov_b32 s63, {val}\ns_atomic_smax s63, s[4:5], {soff} glc\n{skip}:")

    def flag_addr(self, vdst, base, n, sfirst=None, pitch=7):
        self(f"v_min_u32 {vdst}, {n - 1}, {LANE}")
        if sfirst is not None:
            self(f"v_add_u32 {vdst}, {sfirst}, {vdst}")
        self(f"""
        v_lshlrev_b32 {vdst}, {pitch}, {vdst}
        v_add_u32 {vdst}, {base}, {vdst}
        """)

    def lane0_addr(self, vdst, sval):
        self(f"""
        v_mov_b32 {vdst}, {OOB}
        s_mov_b64 exec, 1
        v_mov_b32 {vdst}, {sval}
        s_mov_b64 exec, -1
        """)

    def scalar_init_wait(self):
        top = self.lab("ini")
        self(f"{top}:\ns_load_dwordx16 s[64:79], s[12:13], {DBG_INIT} glc\ns_load_dwordx16 s[80:95], s[12:13], {DBG_INIT + 64} glc")
        self.budget()
        self("s_waitcnt lgkmcnt(0)")
        for k in range(66, 96, 2): self(f"s_and_b64 s[64:65], s[64:65], s[{k}:{k + 1}]")
        self(f"s_and_b32 s64, s64, s65\ns_cbranch_scc0 {top}")

    def pick_sel(self, sdst, t1, t2, show=None):
        self(f"v_lshrrev_b32 {t1}, 8, {t1}\nv_and_b32 {t2}, 3, {LANE}\nv_lshl_or_b32 {t1}, {t1}, 2, {t2}")
        for sh in (8, 4):
            self(f"v_min_u32_dpp {t1}, {t1}, {t1} row_ror:{sh} row_mask:0xf bank_mask:0xf")
        for op in ("v_permlane16_swap_b32", "v_permlane32_swap_b32"):
            self(f"v_mov_b32 {t2}, {t1}\n{op} {t2}, {t1}\nv_min_u32 {t1}, {t1}, {t2}")
        if show: show()
        for sh in (2, 1):
            self(f"v_min_u32_dpp {t1}, {t1}, {t1} row_ror:{sh} row_mask:0xf bank_mask:0xf")
        self(f"v_readfirstlane_b32 {sdst}, {t1}\ns_and_b32 {sdst}, {sdst}, 3\ns_lshl_b32 {sdst}, {sdst}, 13")
        if self.opt.get("sel") is not None:
            self(f"s_mov_b32 {sdst}, {self.opt['sel'] << 13}")

    def page_base(self, sdst, t0, far):
        self.flag_addr(f"v{t0}", FL_TAB, 64)
        self.poll(f"v{t0}", "0", f"v{t0 + 1}", sleep=1)
        self.pick_sel(sdst, f"v{t0 + 1}", f"v{t0 + 2}")
        self(f"s_and_b32 {sdst}, {sdst}, 0x2000\ns_xor_b32 {sdst}, {sdst}, {TOK + (far ^ self.opt.get('far', 0)) * 0x2000}")

    def next_page(self, s):
        return f"s_add_u32 {s}, {s}, {TSEG}\ns_xor_b32 {s}, {s}, 0x2000"

    def tlb_warm(self, v1, v2):
        if not self.opt.get("tlb", 1): return
        skip = self.lab("notlb")
        self(f"""
        s_cmp_lg_u32 {S_WAVE}, 2
        s_cbranch_scc1 {skip}
        v_lshlrev_b32 {v1}, 21, {LANE}
        s_mov_b32 s40, 0x1fff80
        buffer_load_dword {v2}, {v1}, {WS}, s40 offen sc1
        s_add_u32 s40, s40, {64 << 21}
        buffer_load_dword {v2}, {v1}, {WS}, s40 offen sc1
        s_waitcnt vmcnt(0)
        {skip}:
        """)

    def wait_init(self, v1, v2):
        self.flag_addr(v1, DBG_INIT, 32, pitch=2)
        self.poll(v1, "1", v2, srd=DBG)

    def trace_setup(self, v):
        self.vtrace = v
        if not self.opt.get("trace"): return
        self(f"""
        s_lshl_b32 s40, s3, 2
        s_add_u32 s40, s40, {S_WAVE}
        s_lshl_b32 s40, s40, 12
        s_add_u32 s40, s40, {TRACE}
        """)
        self.lane0_addr(v, "s40")

    def stamp(self, k):
        if self.opt.get("trace"):
            self(f"s_memtime s[{64 + 2 * k}:{65 + 2 * k}]")

    def trace_flush(self, vt, drain=True, back=0):
        if not self.opt.get("trace"): return
        self("s_memtime s[84:85]\ns_memrealtime s[86:87]\ns_waitcnt lgkmcnt(0)")
        self(f"s_sub_u32 s40, {S_SEG}, {back}\ns_lshl_b32 s40, s40, 6")
        for q in range(3):
            for k in range(4):
                self(f"v_mov_b32 v{vt + k}, s{64 + 2 * (4 * q + k)}")
            self(f"buffer_store_dwordx4 v[{vt}:{vt + 3}], {self.vtrace}, {WS}, s40 offen offset:{16 * q}")
        if drain: self("s_waitcnt vmcnt(0)")

    def dbg_time(self, slot, v1, v2):
        if not self.opt.get("times"): return
        self(f"""
        s_memrealtime s[40:41]
        v_mov_b32 {v1}, s3
        v_lshlrev_b32 {v1}, 7, {v1}
        v_add_u32 {v1}, {TIMES + slot * 4}, {v1}
        s_waitcnt lgkmcnt(0)
        v_mov_b32 {v2}, s40
        s_mov_b64 exec, 1
        buffer_store_dword {v2}, {v1}, {WS}, 0 offen
        s_mov_b64 exec, -1
        """)

    def wave_sum(self, regs, tmps):
        for sh in (8, 4, 2, 1):
            for v in regs:
                self(f"v_add_f32_dpp v{v}, v{v}, v{v} row_ror:{sh} row_mask:0xf bank_mask:0xf")
        for op in ("v_permlane16_swap_b32", "v_permlane32_swap_b32"):
            for v, t in zip(regs, tmps): self(f"v_mov_b32 v{t}, v{v}")
            for v, t in zip(regs, tmps): self(f"{op} v{t}, v{v}")
            for v, t in zip(regs, tmps): self(f"v_add_f32 v{v}, v{v}, v{t}")

    def group_max(self, regs, tmps):
        for op in ("v_permlane16_swap_b32", "v_permlane32_swap_b32"):
            for v, t in zip(regs, tmps): self(f"v_mov_b32 v{t}, v{v}")
            for v, t in zip(regs, tmps): self(f"{op} v{t}, v{v}")
            for v, t in zip(regs, tmps): self(f"v_max_f32 v{v}, v{v}, v{t}")

    def src_lane(self, vdst, vt, rs, g0, r1=2, r0=1):
        self(f"""
        v_bfe_u32 {vdst}, {LANE}, 5, 1
        v_mul_u32_u24 {vdst}, {g0 * rs}, {vdst}
        v_bfe_u32 {vt}, {LANE}, 4, 1
        v_mul_u32_u24 {vt}, {r1 * rs}, {vt}
        v_add_u32 {vdst}, {vdst}, {vt}
        v_bfe_u32 {vt}, {LANE}, 3, 1
        v_mul_u32_u24 {vt}, {r0 * rs}, {vt}
        v_add_u32 {vdst}, {vdst}, {vt}
        v_lshrrev_b32 {vt}, 3, {LANE}
        v_and_b32 {vt}, 6, {vt}
        v_xor_b32 {vt}, {vt}, {LANE}
        """)
        self(f"v_and_b32 {vt}, 7, {vt}\nv_lshl_add_u32 {vdst}, {vt}, 4, {vdst}")

    def tr_lane(self, vdst, vt, sslot):
        self(f"""
        v_bfe_u32 {vt}, {LANE}, 3, 2
        v_xor_b32 {vt}, {sslot}, {vt}
        v_lshlrev_b32 {vt}, 5, {vt}
        v_lshrrev_b32 {vdst}, 2, {LANE}
        v_lshl_add_u32 {vdst}, {vdst}, 7, {vt}
        v_and_b32 {vt}, 3, {LANE}
        v_lshl_add_u32 {vdst}, {vt}, 3, {vdst}
        """)

    def dense_loader(self, items, vtr0, vtr1, depth=7, pol=" nt", chores={}):
        self(f"s_lshl_b32 s41, {S_WAVE}, 10")
        chunks = [items[i:i + 4] for i in range(0, len(items), 4)]

        def issue(c):
            for k, (setup, vsrc, off, _) in enumerate(chunks[c]):
                if setup: setup()
                slot = (4 * c + k) % 32
                self(f"""
                s_add_u32 m0, s41, {slot * 4096}
                s_mov_b32 s42, {off}
                buffer_load_dwordx4 {vsrc}, {WW}, s42 offen{pol} lds
                """)
        for c in range(min(depth, len(chunks))): issue(c)
        for c in range(len(chunks)):
            newer = sum(len(chunks[k]) for k in range(c + 1, min(c + depth, len(chunks))))
            self(f"s_waitcnt vmcnt({newer}) lgkmcnt(0)\ns_barrier")
            if c + depth < len(chunks): issue(c + depth)
            for k, (_, _, _, dst) in enumerate(chunks[c]):
                slot = (4 * c + k) % 32
                for p in range(2):
                    self(f"ds_read_b64_tr_b16 {dst(p)}, {vtr0 if slot < 16 else vtr1} offset:{(slot % 16) * 4096 + p * 2048}")
            if c in chores: chores[c]()
        self("s_waitcnt lgkmcnt(0)\ns_barrier")


def wreg(i, n):
    return R("a", i, n) if i < 256 else R("v", i - 128, n)
```

```python
from common import *

S_BUF, S_SRC, S_PREF, S_THR, S_FOFF, S_OUT, S_W4, S_W3 = "s26", "s27", "s28", "s29", "s30", "s31", "s32", "s33"
LOG2E = 1.4426950408889634


def fbits(x):
    import struct
    return hex(struct.unpack("<I", struct.pack("<f", x))[0])


class GStage:
    nks = 32
    gstride = 2 * TPART
    nst = 2
    kind = "row"
    orient = ("W", "W")
    flag_next = f"s_add_u32 {S_THR}, {S_THR}, 1"

    def __init__(self, g):
        self.g = g
        self.v = Regs("v", 1, 128)

    def wr(self, t, ks, n=4, p=0):
        return wreg((t * self.nks + ks) * 4 + 2 * p, n)

    def load_rounds(self, rounds, rs, a_of, P, G1, G0):
        g = self.g
        v = Regs("v", self.xr, self.xr + 32)
        vl, vt, tr0, tr1 = (f"v{v.get()}" for _ in range(4))
        g.src_lane(vl, vt, rs, G0)
        g(f"""
        s_lshr_b32 s40, {S_WAVE}, 1
        s_mul_i32 s40, s40, {P * rs}
        s_and_b32 s41, {S_WAVE}, 1
        s_mul_i32 s41, s41, {G1 * rs}
        s_add_u32 s40, s40, s41
        v_add_u32 {vl}, s40, {vl}
        """)
        g.tr_lane(tr0, vt, S_WAVE)
        g(f"v_add_u32 {tr1}, 0x10000, {tr0}")
        items = []
        for t, (setup, scol) in enumerate(rounds):
            vs = f"v{v.get()}"
            g(f"v_add_u32 {vs}, {scol}, {vl}")
            for ks in range(self.nks):
                items.append((setup if ks == 0 else None, vs, a_of(ks) * rs,
                              (lambda p, t=t, ks=ks: self.wr(t, ks, 2, p))))
        if g.opt.get("ilv", 1) and rounds[1][0] is None:
            n = self.nks
            items = [items[t * n + ks] for ks in range(n) for t in range(2)] + items[2 * n:]
        g.dense_loader(items, tr0, tr1, pol="" if self.name == "QKV" and g.opt.get("polg", 0) == 0 else " nt", chores=self.chores(),
                       depth=7 if self.name == "QKV" else g.opt.get("depth", 7))

    def chores(self):
        return {}

    def run_addr(self, sdst, srun):
        self.g(f"""
        s_lshr_b32 s40, {srun}, 1
        s_lshl_b32 s40, s40, 14
        s_and_b32 s41, {srun}, 1
        s_lshl_b32 s41, s41, 12
        s_add_u32 {sdst}, s40, s41
        """)

    def dma_list(self):
        out = []
        if self.kind == "row":
            for u in range(self.nks // 2):
                out.append([f"s_add_u32 m0, s34, {u * 4096 - u * 128}",
                            f"buffer_load_dwordx4 {self.vdma}, {WS}, s35 offen offset:{u * 128} sc1 lds"])
        else:
            for grp in range((self.nks + 7) // 8):
                short = 8 * grp + 8 > self.nks
                pre = [f"s_add_u32 s36, {S_W3 if short else S_W4}, {grp * 16384}", "s_add_u32 m0, s34, s36",
                       f"s_add_u32 s36, s35, {grp * self.gstride}"] + (["s_add_u32 s36, s36, s39"] if short else [])
                for k in range(4):
                    out.append((pre if k == 0 else []) + [f"buffer_load_dwordx4 {self.vdma}, {WS}, s36 offen offset:{k * 1024} sc1 lds"])
        return out

    def xread(self, ks, rt):
        dst = R("v", self.xr + (ks % 4) * 8 + rt * 4, 4)
        if self.kind == "row":
            return f"ds_read_b128 {dst}, {self.vrd[ks & 1]} offset:{(ks >> 1) * 4096 + rt * 2048}"
        off = (2 * ks + rt) * 1024
        return f"ds_read_b128 {dst}, {self.vrd[off >> 16]} offset:{off & 0xffff}"

    def mfma(self, ks, t, rt):
        acc = R("v", self.acc + (t * 2 + rt) * 4, 4)
        x = R("v", self.xr + (ks % 4) * 8 + rt * 4, 4)
        a, b = (self.wr(t, ks), x) if self.orient[t] == "W" else (x, self.wr(t, ks))
        if self.g.opt.get("nomfma") and ks: return "s_nop 3"
        return f"v_mfma_f32_16x16x32_bf16 {acc}, {a}, {b}, {'0' if ks == 0 else acc}"

    def ksteps(self, lo, hi, extra, hooks):
        g, nt = self.g, len(self.orient)
        extra = list(extra)
        per = -(-len(extra) // max(1, hi - lo - 1))
        for ks in range(lo, hi):
            if ks in hooks: hooks[ks]()
            g(f"s_waitcnt lgkmcnt({2 * min(2, self.nks - 1 - ks)})")
            fill = [[self.xread(ks + 3, rt)] for rt in range(2)] if ks + 3 < self.nks else []
            for _ in range(per):
                if extra: fill.append(extra.pop(0))
            for t in range(nt):
                for rt in range(2):
                    g(self.mfma(ks, t, rt))
                    if fill: g("\n".join(fill.pop(0)))
            for f in fill: g("\n".join(f))
        assert not extra

    def prologue(self):
        g, v, nm = self.g, self.v, self.name
        nt = len(self.orient)
        self.xr = v.get(32, 4)
        self.acc = v.get(8 * nt, 4)
        self.tmp = v.get(16, 4)
        self.vdma, self.vfl, self.vft, self.vout, vl0, vl1, vd, vtrc = (f"v{v.get()}" for _ in range(8))
        self.vrd = [f"v{v.get()}", f"v{v.get()}"]
        t0, t1 = f"v{self.tmp}", f"v{self.tmp + 1}"
        g(f"L_{nm}:")
        if self.kind == "row":
            g(f"""
            v_lshrrev_b32 {t0}, 3, {LANE}
            v_and_b32 {t1}, 6, {t0}
            v_xor_b32 {t1}, {t1}, {LANE}
            v_and_b32 {t1}, 7, {t1}
            v_lshlrev_b32 {t1}, 4, {t1}
            v_lshl_add_u32 {self.vdma}, {t0}, 11, {t1}
            s_lshl_b32 s40, {S_WAVE}, 14
            v_add_u32 {self.vdma}, s40, {self.vdma}
            s_lshl_b32 {S_W4}, {S_WAVE}, 10
            v_and_b32 {t0}, 6, {LANE}
            v_lshrrev_b32 {t1}, 4, {LANE}
            v_xor_b32 {t0}, {t0}, {t1}
            v_lshlrev_b32 {t0}, 4, {t0}
            v_and_b32 {t1}, 15, {LANE}
            v_lshl_add_u32 {vl0}, {t1}, 7, {t0}
            v_xor_b32 {vl1}, 64, {vl0}
            """)
        else:
            g(f"""
            v_lshlrev_b32 {self.vdma}, 4, {LANE}
            s_lshl_b32 {S_W4}, {S_WAVE}, 12
            s_min_u32 {S_W3}, {S_W4}, 0x2000
            v_mov_b32 {vl0}, {self.vdma}
            v_add_u32 {vl1}, 0x10000, {vl0}
            """)
            if nm == "F1": self.quad_major(self.vdma)
        self.weights()
        g.dbg_time(self.dbg_slot, t0, t1)
        self.setup()
        g.trace_setup(vtrc)
        return vl0, vl1, vd

    def emit(self):
        g, nm = self.g, self.name
        BUF = self.nks * 2048
        DONE = 2 * BUF
        vl0, vl1, vd = self.prologue()
        g(f"""
        v_lshlrev_b32 {vd}, 2, {LANE}
        v_add_u32 {vd}, {DONE}, {vd}
        s_mov_b32 {S_SEG}, 0
        s_mov_b32 {S_BUF}, 0
        s_mov_b32 {S_THR}, 1
        s_mov_b32 {S_FOFF}, 0
        s_mov_b32 {S_PREF}, 0
        """)
        if g.opt.get("hold") == nm: g.poll(self.vfl, "64", self.vft, sleep=8)
        g(f"""
        L_{nm}_top:
        s_cmp_eq_u32 {S_PREF}, 1
        s_cbranch_scc1 L_{nm}_go
        s_cmp_eq_u32 {S_PREF}, 2
        s_cbranch_scc1 L_{nm}_mid
        s_cmp_lg_u32 {S_WAVE}, 0
        s_cbranch_scc1 L_{nm}_park
        buffer_load_dword {self.vft}, {self.vfl}, {WS}, {S_FOFF} offen sc1
        s_waitcnt vmcnt(1)
        s_barrier
        """)
        g.signal("s62", S_SEG)
        g(f"s_cmp_ge_u32 {S_SEG}, {NSEG}\ns_cbranch_scc1 L_END")
        g.stamp(0)
        g(f"""
        s_waitcnt vmcnt(0)
        v_cmp_gt_i32 vcc, {S_THR}, {self.vft}
        s_cbranch_vccz L_{nm}_issue
        """)
        g.poll(self.vfl, S_THR, self.vft, soff=S_FOFF, sleep=g.opt.get("gsleep", 1))
        g(f"""
        s_branch L_{nm}_issue
        L_{nm}_park:
        s_waitcnt vmcnt(0)
        s_barrier
        s_cmp_ge_u32 {S_SEG}, {NSEG}
        s_cbranch_scc1 L_END
        """)
        g.stamp(0)
        g(f"L_{nm}_issue:\ns_barrier\nL_{nm}_mid:")
        own = f"s_add_u32 s34, {S_BUF}, {S_W4}" if self.kind == "row" else f"s_mov_b32 s34, {S_BUF}"
        g(f"{own}\ns_mov_b32 s35, {S_SRC}")
        dmas = self.dma_list()
        N = g.opt.get("n0", 12)
        dmas, rest = dmas[:N], dmas[N:]
        for d in dmas: g("\n".join(d) + ("\ns_nop 0" if g.opt.get("rr", 1) else ""))
        g(f"s_cmp_eq_u32 {S_PREF}, 0\ns_cbranch_scc1 L_{nm}_go\ns_mov_b32 {S_PREF}, 0\ns_waitcnt vmcnt({N})\ns_barrier")
        g.signal("s62", S_SEG, 0)
        g(f"L_{nm}_go:")
        g.stamp(1)
        g(f"""
        v_add_u32 {self.vrd[0]}, {S_BUF}, {vl0}
        v_add_u32 {self.vrd[1]}, {S_BUF}, {vl1}
        s_sub_u32 {S_BUF}, {BUF}, {S_BUF}
        {g.next_page(S_SRC)}
        """)
        g(self.flag_next)
        g(f"s_waitcnt vmcnt({N - 4})\ns_barrier")
        for ks in range(3):
            for rt in range(2): g(self.xread(ks, rt))
        ask = f"""s_lshl_b32 s40, {S_WAVE}, 8
        s_add_u32 m0, s40, {DONE}
        s_cmp_eq_u32 {S_WAVE}, 0
        s_cselect_b32 s40, {S_FOFF}, {OOB}
        buffer_load_dword {self.vfl}, {WS}, s40 offen sc1 lds"""
        self.ksteps(0, 5, rest, {})
        g(f"s_waitcnt vmcnt({N - 8 + len(rest)})\ns_barrier\n{own}\ns_mov_b32 s35, {S_SRC}")
        self.ksteps(5, 13, [], {g.opt.get("pq1", 12): lambda: g(ask)})
        blk3 = N + len(rest) - 12
        late = g.opt.get("b3", 19)

        def report():
            g(f"s_lshl_b32 s40, {S_WAVE}, 1\ns_add_u32 s40, s40, 1\ns_cmp_lg_u32 s40, {S_PREF}\ns_cbranch_scc1 L_{nm}_s2")
            g.signal("s62", S_SEG)
            g(f"L_{nm}_s2:")
        if late > 13:
            if g.opt.get("psig", 1):
                g(f"s_waitcnt vmcnt({blk3 + 1})\ns_barrier")
                report()
            else:
                g(f"""
                s_waitcnt vmcnt({blk3 + 1 + self.nst})
                s_cmp_lg_u32 {S_PREF}, 0
                s_cbranch_scc1 L_{nm}_b2
                s_waitcnt vmcnt({blk3 + 1})
                L_{nm}_b2:
                s_barrier
                """)
            self.ksteps(13, late, [], {})
        g(f"""
        s_waitcnt vmcnt(0)
        s_barrier
        ds_read_b32 {self.vft}, {vd}
        """)
        if not g.opt.get("psig", 1): report()
        self.ksteps(late, late + 2, [], {})
        late += 2
        g(f"""
        s_waitcnt lgkmcnt(4)
        v_cmp_gt_i32 vcc, {S_THR}, {self.vft}
        s_mov_b32 {S_PREF}, 0
        s_cbranch_vccnz L_{nm}_nopf
        s_cmp_ge_u32 {S_SEG}, {0 if nm in str(g.opt.get("nopref")) else NSEG - 1}
        s_cbranch_scc1 L_{nm}_nopf
        s_mov_b32 {S_PREF}, 1
        """)
        hist = list(g.hist)
        self.ksteps(late, self.nks, dmas, {})
        g.flush()
        g(f"s_branch L_{nm}_epi\nL_{nm}_nopf:")
        g.hist = hist
        if g.opt.get("mid", 1):
            k1, k2 = max(late + 1, self.nks - g.opt.get("mq", 8)), self.nks - 2
            self.ksteps(late, k1, [], {})
            g("s_barrier\n" + ask)
            self.ksteps(k1, k2, [], {})
            g(f"s_waitcnt vmcnt(0)\ns_barrier\nds_read_b32 {self.vft}, {vd}")
            self.ksteps(k2, self.nks, [], {})
            g(f"""
            v_cmp_gt_i32 vcc, {S_THR}, {self.vft}
            s_cmp_eq_u64 vcc, 0
            s_cselect_b32 {S_PREF}, 2, 0
            s_cmp_lt_u32 {S_SEG}, {NSEG - 1}
            s_cselect_b32 {S_PREF}, {S_PREF}, 0
            """)
        else:
            self.ksteps(late, self.nks, [], {})
        g(f"L_{nm}_epi:")
        g.stamp(2)
        self.epilogue()
        g.stamp(3)
        g.trace_flush(self.tmp + 12, drain=False)
        g(f"""
        s_add_u32 {S_SEG}, {S_SEG}, 1
        {g.next_page(S_OUT)}
        """)
        g.flush()
        g(f"s_branch L_{nm}_top")

    def quad_major(self, vdst):
        t0 = f"v{self.tmp}"
        self.g(f"""
        v_and_b32 {vdst}, 3, {LANE}
        v_lshlrev_b32 {vdst}, 4, {vdst}
        v_lshrrev_b32 {t0}, 4, {LANE}
        v_lshl_add_u32 {vdst}, {t0}, 6, {vdst}
        v_bfe_u32 {t0}, {LANE}, 2, 2
        v_lshl_add_u32 {vdst}, {t0}, 8, {vdst}
        """)

    def sig_addr(self, base):
        self.g(f"s_lshl_b32 s62, {S_IDX}, 7\ns_add_u32 s62, s62, {base}")

    def a(self, t, rt, r=0):
        return self.acc + (t * 2 + rt) * 4 + r


A_H = lambda ks: 512 * (ks >> 4) + 16 * (ks & 15)
A_O = lambda ks: 128 * (ks >> 2) + 16 * (ks & 3)


class QKV(GStage):
    name, orient, dbg_slot, nst = "QKV", ("W", "W", "X"), 3, 3
    flag_next = f"s_add_u32 {S_FOFF}, {S_FOFF}, 128"
    src_step = 65536

    def chores(self):
        def init():
            self.g(f"s_cmp_lg_u32 {S_WAVE}, 0\ns_cbranch_scc1 L_QKV_noinit")
            self.g.scalar_init_wait()
            self.g("L_QKV_noinit:")
        return {10: init}

    def weights(self):
        g = self.g
        g(f"""
        s_and_b32 s43, {S_IDX}, 1
        s_lshr_b32 s44, {S_IDX}, 1
        s_lshl_b32 s44, s44, 8
        s_add_u32 s45, s44, 128
        s_lshl_b32 s46, s43, 7
        s_add_u32 s46, s46, s44
        s_load_dwordx4 s[48:51], s[0:1], {K_WQ}
        s_waitcnt lgkmcnt(0)
        s_cmp_eq_u32 s43, 0
        s_cselect_b32 s8, s48, s50
        s_cselect_b32 s9, s49, s51
        s_mov_b32 s10, {8 << 20}
        s_mov_b32 s11, 0x20000
        """)
        self.load_rounds([(None, "s44"), (None, "s45"), (lambda: g.srd(WW, K_WV, 8 << 20), "s46")], 8192, A_H, 256, 8, 4)

    def setup(self):
        g = self.g
        g(f"""
        s_lshr_b32 s62, {S_IDX}, 1
        s_lshl_b32 s62, s62, 7
        s_and_b32 s40, {S_IDX}, 1
        s_lshl_b32 s40, s40, 2
        s_add_u32 s62, s62, s40
        s_add_u32 s62, s62, {FL_QKV}
        """)
        self.vout2 = f"v{self.v.get()}"
        g(f"""
        s_mov_b32 {S_SRC}, {H1}
        s_lshr_b32 s40, {S_IDX}, 1
        s_mul_i32 {S_OUT}, s40, {THEAD}
        s_and_b32 s41, {S_IDX}, 1
        s_lshl_b32 s42, {S_WAVE}, 11
        s_lshl_b32 s40, s41, 14
        s_add_u32 s40, s40, s42
        v_lshl_add_u32 {self.vout}, {LANE}, 4, s40
        s_lshl_b32 s40, s41, 10
        s_add_u32 s40, s40, s42
        s_add_u32 s40, s40, {2 * TPART}
        v_lshl_add_u32 {self.vout2}, {LANE}, 4, s40
        """)

    def emit(self):
        g, t = self.g, None
        vl0, vl1, _ = self.prologue()
        t = self.tmp
        order = [(0, 0), (1, 0), (0, 1), (1, 1), (2, 0), (2, 1)]
        dst = lambda tt, rt: t + 4 * rt + 2 * tt if tt < 2 else t + 8 + 2 * rt
        cvt = lambda tt, rt: [f"v_cvt_pk_bf16_f32 v{dst(tt, rt) + h}, v{self.a(tt, rt, 2 * h)}, v{self.a(tt, rt, 2 * h + 1)}" for h in range(2)]
        stores = [f"buffer_store_dwordx4 {R('v', t + 4 * rt, 4)}, {self.vout}, {WS}, s37 offen offset:{rt * 1024} sc1" for rt in range(2)]
        stores.append(f"buffer_store_dwordx4 {R('v', t + 8, 4)}, {self.vout2}, {WS}, s37 offen sc1")
        dmas = self.dma_list()

        g(f"""
        v_lshrrev_b32 {self.vfl}, 3, {LANE}
        v_lshlrev_b32 {self.vfl}, 7, {self.vfl}
        v_and_b32 {self.vft}, 7, {LANE}
        v_lshl_add_u32 {self.vfl}, {self.vft}, 2, {self.vfl}
        v_add_u32 {self.vfl}, {FL_LN1}, {self.vfl}
        s_mov_b32 {S_SEG}, 0
        s_mov_b32 s37, {OOB}
        s_mov_b32 {S_FOFF}, 0
        s_mov_b32 s34, {S_W4}
        s_mov_b32 s35, {S_SRC}
        v_mov_b32 {self.vrd[0]}, {vl0}
        v_mov_b32 {self.vrd[1]}, {vl1}
        """)
        g.poll(self.vfl, "1", self.vft, sleep=1)
        for d in dmas: g("\n".join(d))
        g.page_base("s40", t, 0)
        g(f"s_add_u32 {S_OUT}, {S_OUT}, s40\ns_barrier")
        g.dbg_time(18, f"v{t}", f"v{t + 1}")
        for ks in range(3):
            for rt in range(2): g(self.xread(ks, rt))
        g(f"L_QKV_top:")
        g.stamp(1)
        first, sig, last = 3, g.opt.get("qsig", 12), 29
        for ks in range(32):
            fill = [[self.xread((ks + 3) % 32, rt)] for rt in range(2)]
            if ks == first:
                g(f"""
                s_xor_b32 s34, s34, 0x10000
                s_add_u32 s35, s35, 65536
                s_cbranch_vccz L_QKV_have
                """)
                g.poll(self.vfl, "1", self.vft, soff=S_FOFF, sleep=1)
                g("L_QKV_have:")
                g("s_barrier")
            if ks == sig:
                g(f"s_waitcnt vmcnt({sig - first})\ns_barrier")
                g.signal("s62", S_SEG, 0)
            if ks == last:
                g(f"""
                s_waitcnt vmcnt(0)
                s_barrier
                v_xor_b32 {self.vrd[0]}, 0x10000, {self.vrd[0]}
                v_xor_b32 {self.vrd[1]}, 0x10000, {self.vrd[1]}
                """)
            if first <= ks < first + 16: fill.append(dmas[ks - first])
            if ks in (1, 2): fill += [[x] for x in stores[2 * ks - 2:2 * ks]]
            if ks == 2: fill.append([f"v_cmp_gt_i32 vcc, 1, {self.vft}"])
            if ks == 20:
                fill.append([f"s_add_u32 {S_FOFF}, {S_SEG}, 2", f"s_and_b32 {S_FOFF}, {S_FOFF}, 56", f"s_lshl_b32 {S_FOFF}, {S_FOFF}, 7",
                             f"buffer_load_dword {self.vft}, {self.vfl}, {WS}, {S_FOFF} offen sc1"])
            g("s_waitcnt lgkmcnt(4)")
            for i, (tt, rt) in enumerate(order):
                if ks == 0: g("\n".join(cvt(tt, rt)))
                g(self.mfma(ks, tt, rt))
                if fill and (ks or i >= 4): g("\n".join(fill.pop(0)))
            assert not fill
        g.stamp(2); g.stamp(3)
        g.trace_flush(t + 12, drain=False)
        g(f"""
        s_mov_b32 s37, {S_OUT}
        s_add_u32 {S_OUT}, {S_OUT}, {TSEG}
        s_xor_b32 {S_OUT}, {S_OUT}, 0x2000
        s_add_u32 {S_SEG}, {S_SEG}, 1
        s_cmp_lt_u32 {S_SEG}, {NSEG}
        s_cbranch_scc1 L_QKV_top
        """)
        for tt, rt in order: g("\n".join(cvt(tt, rt)))
        g("\n".join(stores) + "\ns_waitcnt vmcnt(0) lgkmcnt(0)\ns_barrier")
        g.signal("s62", S_SEG, 0)
        g("s_branch L_END")


class PartialOut(GStage):
    kind = "frag"

    def out_setup(self, base):
        self.g(f"""
        s_lshl_b32 s40, {S_IDX}, 14
        s_add_u32 s40, s40, s38
        s_add_u32 {S_OUT}, s40, {base}
        s_lshl_b32 s40, {S_WAVE}, 11
        """)
        self.quad_major(self.vout)
        self.g(f"v_add_u32 {self.vout}, s40, {self.vout}")

    def epilogue(self):
        g, t = self.g, self.tmp
        for rt in range(2):
            for tt in range(2):
                for h in range(2):
                    g(f"v_cvt_pk_bf16_f32 v{t + 4 * rt + 2 * tt + h}, v{self.a(tt, rt, 2 * h)}, v{self.a(tt, rt, 2 * h + 1)}")
            g(f"buffer_store_dwordx4 {R('v', t + 4 * rt, 4)}, {self.vout}, {WS}, {S_OUT} offen offset:{rt * 1024} sc1")

    def col_rounds(self, krows):
        self.g(f"""
        s_lshr_b32 s44, {S_IDX}, 3
        s_mul_i32 s44, s44, {krows * 2048}
        s_and_b32 s45, {S_IDX}, 7
        s_lshl_b32 s45, s45, 8
        s_add_u32 s44, s44, s45
        s_add_u32 s45, s44, 128
        """)
        return [(None, "s44"), (None, "s45")]


class WO(PartialOut):
    name, dbg_slot = "WO", 4
    gstride = 2 * THEAD

    def weights(self):
        self.g.srd(WW, K_WO, 8 << 20)
        self.load_rounds(self.col_rounds(1024), 2048, A_O, 64, 8, 4)

    def setup(self):
        g = self.g
        g(f"s_and_b32 s43, {S_IDX}, 24")
        g.flag_addr(self.vfl, FL_QK, 8, "s43")
        self.sig_addr(FL_WO)
        g.page_base("s38", self.tmp, 1)
        g(f"""
        s_xor_b32 {S_SRC}, s38, 0x2000
        s_lshr_b32 s40, {S_WAVE}, 1
        s_add_u32 s40, s40, s43
        s_mul_i32 s40, s40, {THEAD}
        s_and_b32 s41, {S_WAVE}, 1
        s_lshl_b32 s41, s41, 12
        s_add_u32 s40, s40, s41
        s_add_u32 s40, s40, {3 * TPART}
        s_add_u32 {S_SRC}, {S_SRC}, s40
        """)
        self.out_setup(PWO)


class F2(PartialOut):
    name, nks, dbg_slot = "F2", 38, 6

    def weights(self):
        g = self.g
        g.srd(WW, K_W2, 3584 * 2048)
        rounds = self.col_rounds(38 * 32)
        g(f"s_cmp_ge_u32 {S_IDX}, 16\ns_cselect_b32 s40, {64 * 2048}, 0\ns_sub_u32 s44, s44, s40\ns_sub_u32 s45, s45, s40")
        self.load_rounds(rounds, 2048, lambda ks: 32 * ks, 8, 16, 4)
        g(f"s_cmp_lt_u32 {S_IDX}, 16\ns_cbranch_scc1 L_F2_keep")
        for t in range(2):
            for k in range(8):
                g(f"v_accvgpr_write_b32 a{t * 38 * 4 + k}, 0")
        g.flush()
        g("L_F2_keep:")

    def setup(self):
        g = self.g
        g.page_base("s38", self.tmp, 1)
        g(f"s_lshr_b32 s43, {S_IDX}, 3\ns_mul_i32 s43, s43, 19\ns_min_u32 s43, s43, 37")
        g.flag_addr(self.vfl, FL_F1, 19, "s43")
        g(f"s_add_u32 s44, s43, {S_WAVE}\ns_min_u32 s45, {S_WAVE}, 2\ns_add_u32 s45, s45, s43")
        self.run_addr(S_SRC, "s44")
        self.run_addr("s39", "s45")
        g(f"s_sub_u32 s39, s39, {S_SRC}\ns_add_u32 {S_SRC}, {S_SRC}, s38\ns_add_u32 {S_SRC}, {S_SRC}, {ACT}")
        self.sig_addr(FL_F2)
        self.out_setup(PF2)


class F1(GStage):
    name, dbg_slot, kind, nst = "F1", 5, "frag", 1

    def weights(self):
        g = self.g
        g.srd(WW, K_W1, 1024 * 7168)
        g(f"s_lshl_b32 s44, {S_IDX}, 7")
        self.load_rounds([(None, "s44"), (lambda: g.srd(WW, K_W3, 1024 * 7168), "s44")], 7168, A_O, 64, 8, 4)

    def setup(self):
        g, t0 = self.g, f"v{self.tmp}"
        g.flag_addr(self.vfl, FL_LN2, 8)
        self.sig_addr(FL_F1)
        g.page_base("s38", self.tmp, 1)
        self.run_addr(S_SRC, S_WAVE)
        self.run_addr(S_OUT, S_IDX)
        g(f"""
        s_add_u32 {S_SRC}, {S_SRC}, s38
        s_add_u32 {S_SRC}, {S_SRC}, {H2}
        s_add_u32 {S_OUT}, {S_OUT}, s38
        s_add_u32 {S_OUT}, {S_OUT}, {ACT}
        s_lshr_b32 s40, {S_WAVE}, 1
        s_lshl_b32 s40, s40, 11
        s_and_b32 s41, {S_WAVE}, 1
        s_lshl_b32 s41, s41, 9
        s_add_u32 s40, s40, s41
        v_and_b32 {t0}, 31, {LANE}
        v_lshl_add_u32 {self.vout}, {t0}, 4, s40
        v_lshrrev_b32 {t0}, 5, {LANE}
        v_lshl_add_u32 {self.vout}, {t0}, 10, {self.vout}
        s_mov_b32 s37, {fbits(-LOG2E)}
        """)

    def epilogue(self):
        g, t = self.g, self.tmp
        idx = [(rt, r) for rt in range(2) for r in range(4)]
        for i, (rt, r) in enumerate(idx): g(f"v_mul_f32 v{t + i}, s37, v{self.a(0, rt, r)}")
        for i in range(8): g(f"v_exp_f32 v{t + i}, v{t + i}")
        for rt in range(2):
            for h in range(2):
                a, b = self.a(0, rt, 2 * h), self.a(1, rt, 2 * h)
                g(f"v_pk_mul_f32 {R('v', a, 2)}, {R('v', a, 2)}, {R('v', b, 2)}")
        for i in range(8): g(f"v_add_f32 v{t + i}, 1.0, v{t + i}")
        for i in range(8): g(f"v_rcp_f32 v{t + i}, v{t + i}")
        for rt in range(2):
            for h in range(2):
                a = self.a(0, rt, 2 * h)
                g(f"v_pk_mul_f32 {R('v', a, 2)}, {R('v', a, 2)}, {R('v', t + 4 * rt + 2 * h, 2)}")
        for rt in range(2):
            for h in range(2):
                g(f"v_cvt_pk_bf16_f32 v{t + 8 + 2 * rt + h}, v{self.a(0, rt, 2 * h)}, v{self.a(0, rt, 2 * h + 1)}")
        g(f"""
        v_permlane32_swap_b32 v{t + 8}, v{t + 10}
        v_permlane32_swap_b32 v{t + 9}, v{t + 11}
        buffer_store_dwordx4 {R('v', t + 8, 4)}, {self.vout}, {WS}, {S_OUT} offen sc1
        """)
```

```python
from common import *
from gstage import fbits, LOG2E

P2 = lambda r: R("v", r, 2)
P4 = lambda r: R("v", r, 4)


def emit_init(g):
    g(f"""
    L_INIT:
    s_lshl_b32 s40, {S_R}, 2
    s_add_u32 s40, s40, {S_WAVE}
    s_lshl_b32 s40, s40, 12
    s_add_u32 s41, s40, {TRIG}
    s_add_u32 s43, s40, {MEMS + 0x10000 - 0x40000}
    s_add_u32 s42, s40, 0x80000
    v_lshlrev_b32 v1, 4, {LANE}
    v_mov_b32 v4, -1
    v_mov_b32 v5, -1
    v_mov_b32 v6, -1
    v_mov_b32 v7, -1
    """)
    g(f"s_cmp_lt_u32 {S_R}, 16\ns_cselect_b32 s41, s41, s43\ns_cmp_lt_u32 {S_R}, 24\ns_cselect_b32 s41, s41, {OOB}")
    for s in ("s41", "s40", "s42"):
        for k in range(4):
            g(f"buffer_store_dwordx4 v[4:7], v1, {WS}, {s} offen offset:{k * 1024} sc1")
    g.srd(XS, K_MEM0, 16384)
    g(f"""
    s_and_b32 s40, {S_WAVE}, 1
    s_lshl_b32 s40, s40, 3
    v_bfe_u32 v8, {LANE}, 2, 3
    v_add_u32 v8, s40, v8
    s_lshr_b32 s40, {S_WAVE}, 1
    s_lshl_b32 s40, s40, 3
    v_and_b32 v9, 3, {LANE}
    v_add_u32 v9, s40, v9
    v_bfe_u32 v10, v8, 1, 1
    v_lshl_add_u32 v9, v10, 2, v9
    v_lshrrev_b32 v10, 2, v8
    v_and_b32 v11, 1, v8
    v_lshl_add_u32 v10, v10, 1, v11
    s_lshl_b32 s40, {S_R}, 6
    v_lshl_add_u32 v10, v10, 11, s40
    v_lshl_add_u32 v10, v9, 1, v10
    buffer_load_ushort v11, v10, {XS}, 0 offen
    buffer_load_ushort v12, v10, {XS}, 0 offen offset:32
    s_bfe_u32 s41, {S_R}, 0x10002
    s_mul_i32 s41, s41, {CH}
    s_lshr_b32 s40, {S_R}, 3
    s_lshl_b32 s40, s40, 11
    s_add_u32 s40, s40, s41
    s_and_b32 s41, {S_R}, 3
    s_lshl_b32 s41, s41, 9
    s_add_u32 s40, s40, s41
    s_lshl_b32 s41, {S_WAVE}, 7
    s_add_u32 s40, s40, s41
    s_add_u32 s40, s40, {MEMS}
    s_add_u32 s41, s40, 0x4000
    v_and_b32 v8, 31, {LANE}
    v_lshlrev_b32 v8, 2, v8
    v_lshrrev_b32 v9, 5, {LANE}
    v_lshl_add_u32 v8, v9, 13, v8
    s_waitcnt vmcnt(0)
    v_lshl_or_b32 v11, v12, 16, v11
    v_min_u32 v11, -2, v11
    buffer_store_dword v11, v8, {WS}, s40 offen sc1
    buffer_store_dword v11, v8, {WS}, s41 offen sc1
    """)
    g(f"s_lshl_b32 s40, {S_R}, 2\ns_add_u32 s40, s40, {DBG_INIT}\ns_cmp_eq_u32 {S_WAVE}, 0\ns_cselect_b32 s40, s40, {OOB}")
    g.lane0_addr("v2", "s40")
    g(f"""
    v_mov_b32 v3, 1
    s_waitcnt vmcnt(0)
    s_barrier
    buffer_store_dword v3, v2, {DBG}, 0 offen sc1
    """)
    g("s_branch L_LN1")


def emit_mod(g):
    g("L_MOD:")
    g.srd(XS, K_C, 2048)
    g.srd(WW, K_WMOD, 1024 * 12288)
    rs = 12288
    g(f"""
    s_lshl_b32 s40, {S_WAVE}, 9
    v_lshl_add_u32 v1, {LANE}, 3, s40
    buffer_load_dwordx2 v[8:9], v1, {XS}, 0 offen
    """)
    g.src_lane("v2", "v3", rs, 8)
    g(f"""
    s_lshr_b32 s40, {S_WAVE}, 1
    s_mul_i32 s40, s40, {4 * rs}
    s_and_b32 s41, {S_WAVE}, 1
    s_mul_i32 s41, s41, {16 * rs}
    s_add_u32 s40, s40, s41
    s_lshl_b32 s41, {S_IDX}, 7
    s_add_u32 s40, s40, s41
    v_add_u32 v2, s40, v2
    s_lshl_b32 s41, {S_WAVE}, 10
    """)
    for ks in range(32):
        g(f"""
        s_add_u32 m0, s41, {ks * 4096}
        s_mov_b32 s42, {ks * 32 * rs}
        buffer_load_dwordx4 v2, {WW}, s42 offen nt lds
        """)
    g.tr_lane("v4", "v3", S_WAVE)
    g(f"""
    v_add_u32 v5, 0x10000, v4
    v_lshrrev_b32 v6, 4, {LANE}
    v_lshlrev_b32 v6, 4, v6
    v_add_u32 v6, 0x20000, v6
    v_add_u32 v1, 0x20000, v1
    s_mov_b32 s37, {fbits(-LOG2E)}
    s_waitcnt vmcnt(32)
    v_lshlrev_b32 v10, 16, v8
    v_and_b32 v11, 0xffff0000, v8
    v_lshlrev_b32 v12, 16, v9
    v_and_b32 v13, 0xffff0000, v9
    """)
    for i in range(4): g(f"v_mul_f32 v{14 + i}, s37, v{10 + i}")
    for i in range(4): g(f"v_exp_f32 v{14 + i}, v{14 + i}")
    for i in range(4): g(f"v_add_f32 v{14 + i}, 1.0, v{14 + i}")
    for i in range(4): g(f"v_rcp_f32 v{14 + i}, v{14 + i}")
    for i in range(4): g(f"v_mul_f32 v{10 + i}, v{10 + i}, v{14 + i}")
    g("""
    v_cvt_pk_bf16_f32 v8, v10, v11
    v_cvt_pk_bf16_f32 v9, v12, v13
    ds_write_b64 v1, v[8:9]
    """)
    for blk in range(8):
        g(f"s_waitcnt vmcnt({28 - 4 * blk}) lgkmcnt(0)\ns_barrier")
        for k in range(4):
            ks = 4 * blk + k
            for p in range(2):
                g(f"ds_read_b64_tr_b16 {P2(24 + 8 * k + 2 * p)}, {'v4' if ks < 16 else 'v5'} offset:{(ks % 16) * 4096 + p * 2048}")
            g(f"ds_read_b128 {P4(28 + 8 * k)}, v6 offset:{ks * 64}")
        for k in range(4):
            g(f"s_waitcnt lgkmcnt({9 - 3 * k})")
            g(f"v_mfma_f32_16x16x32_bf16 v[20:23], {P4(24 + 8 * k)}, {P4(28 + 8 * k)}, {'0' if blk + k == 0 else 'v[20:23]'}")
    g(f"""
    s_lshl_b32 s40, {S_IDX}, 8
    s_lshl_b32 s41, {S_WAVE}, 6
    s_add_u32 s40, s40, s41
    s_add_u32 s40, s40, {MOD}
    v_and_b32 v2, 15, {LANE}
    v_cmp_eq_u32 vcc, 0, v2
    v_mov_b32 v3, {OOB}
    v_cndmask_b32 v1, v3, {LANE}, vcc
    v_cvt_pk_bf16_f32 v8, v20, v21
    v_cvt_pk_bf16_f32 v9, v22, v23
    v_lshlrev_b32 v20, 16, v8
    v_and_b32 v21, 0xffff0000, v8
    v_lshlrev_b32 v22, 16, v9
    v_and_b32 v23, 0xffff0000, v9
    buffer_store_dwordx4 v[20:23], v1, {WS}, s40 offen sc1
    """)
    g.wait_init("v2", "v3")
    g(f"s_lshl_b32 s40, {S_IDX}, 7\ns_add_u32 s40, s40, {FL_MOD}")
    g.lane0_addr("v2", "s40")
    g(f"""
    v_mov_b32 v3, 1
    s_barrier
    s_cmp_lg_u32 {S_WAVE}, 0
    s_cbranch_scc1 L_MOD_done
    buffer_store_dword v3, v2, {WS}, 0 offen sc1
    L_MOD_done:
    s_cmp_ge_u32 {S_IDX}, 32
    s_cbranch_scc1 L_MOD_back
    """)


def load_mod(g, dst, part, v16, plus1=False):
    g(f"s_mov_b32 s40, {MOD + part * 4096}")
    for q in range(4):
        g(f"buffer_load_dwordx4 {P4(dst + 4 * q)}, {v16}, {WS}, s40 offen offset:{q * 1024} sc1")
    if plus1:
        g("s_waitcnt vmcnt(0)")
        for i in range(16): g(f"v_add_f32 v{dst + i}, 1.0, v{dst + i}")


def unpack(g, dst, src, n):
    for i in range(n):
        g(f"v_lshlrev_b32 v{dst + 2 * i}, 16, v{src + i}")
        g(f"v_and_b32 v{dst + 2 * i + 1}, 0xffff0000, v{src + i}")


def pack(g, dst, src, n):
    for i in range(n):
        g(f"v_cvt_pk_bf16_f32 v{dst + i}, v{src + 2 * i}, v{src + 2 * i + 1}")


def ln_normalize(g, rows, st):
    S = [st + 4 * i for i in range(len(rows))]
    for x, s in zip(rows, S): g(f"v_pk_add_f32 {P2(s)}, {P2(x)}, {P2(x + 2)}")
    for k in range(2, 8):
        for x, s in zip(rows, S): g(f"v_pk_add_f32 {P2(s)}, {P2(s)}, {P2(x + 2 * k)}")
    for s in S: g(f"v_add_f32 v{s}, v{s}, v{s + 1}")
    g.wave_sum(S, [s + 1 for s in S])
    for s in S: g(f"v_mul_f32 v{s}, {fbits(-1 / 1024)}, v{s}")
    for k in range(8):
        for x, s in zip(rows, S): g(f"v_pk_add_f32 {P2(x + 2 * k)}, {P2(x + 2 * k)}, {P2(s)} op_sel_hi:[1,0]")
    for x, s in zip(rows, S): g(f"v_pk_mul_f32 {P2(s)}, {P2(x)}, {P2(x)}")
    for k in range(1, 8):
        for x, s in zip(rows, S): g(f"v_pk_fma_f32 {P2(s)}, {P2(x + 2 * k)}, {P2(x + 2 * k)}, {P2(s)}")
    for s in S: g(f"v_add_f32 v{s}, v{s}, v{s + 1}")
    g.wave_sum(S, [s + 1 for s in S])
    for s in S: g(f"v_mul_f32 v{s}, {fbits(1 / 1024)}, v{s}")
    for s in S: g(f"v_add_f32 v{s}, {fbits(1e-5)}, v{s}")
    for s in S: g(f"v_rsq_f32 v{s}, v{s}")
    for k in range(8):
        for x, s in zip(rows, S): g(f"v_pk_mul_f32 {P2(x + 2 * k)}, {P2(x + 2 * k)}, {P2(s)} op_sel_hi:[1,0]")


def emit_ln1(g):
    g("L_LN1:")
    g.dbg_time(20, "v1", "v2")
    g.srd(XS, K_X, 4 << 20)
    raw, rows, st, c1, sa = 8, [40, 56, 72, 88], 104, 120, 136
    g(f"""
    s_sub_u32 s43, 7, {S_X}
    s_lshl_b32 s43, s43, 5
    s_add_u32 s43, s43, {S_R}
    s_lshl_b32 s43, s43, 2
    s_add_u32 s43, s43, {S_WAVE}
    s_lshl_b32 s44, s43, 13
    s_add_u32 s45, s44, 4096
    v_lshlrev_b32 v1, 3, {LANE}
    v_lshlrev_b32 v2, 4, {LANE}
    """)
    for i in range(4):
        for q in range(4):
            g(f"buffer_load_dwordx2 {P2(raw + 8 * i + 2 * q)}, v1, {XS}, {'s44' if i < 2 else 's45'} offen offset:{(i & 1) * 2048 + q * 512}{' nt' if g.opt.get('xnt', 1) else ''}")
    g("s_waitcnt vmcnt(0)")
    for i in range(4): unpack(g, rows[i], raw + 8 * i, 8)
    ln_normalize(g, rows, st)
    g.dbg_time(21, "v3", "v4")
    g.wait_init("v3", "v4")
    g.flag_addr("v3", FL_MOD, 32)
    g.poll("v3", "1", "v4")
    g.dbg_time(22, "v3", "v4")
    load_mod(g, sa, 0, "v2")
    load_mod(g, c1, 1, "v2", plus1=True)
    g(f"s_add_u32 s44, s44, {H1}\ns_add_u32 s45, s45, {H1}")
    for i in range(4):
        for k in range(8):
            g(f"v_pk_fma_f32 {P2(rows[i] + 2 * k)}, {P2(rows[i] + 2 * k)}, {P2(c1 + 2 * k)}, {P2(sa + 2 * k)}")
        pack(g, raw + 8 * i, rows[i], 8)
        for h in range(2):
            g(f"buffer_store_dwordx4 {P4(raw + 8 * i + 4 * h)}, v2, {WS}, {'s44' if i < 2 else 's45'} offen offset:{(i & 1) * 2048 + h * 1024} sc1")
    g(f"""
    s_lshr_b32 s40, s43, 3
    s_lshl_b32 s40, s40, 7
    s_and_b32 s41, s43, 7
    s_lshl_b32 s41, s41, 2
    s_add_u32 s40, s40, s41
    s_add_u32 s40, s40, {FL_LN1}
    """)
    g.lane0_addr("v3", "s40")
    g(f"""
    v_mov_b32 v4, 1
    s_waitcnt vmcnt(0)
    buffer_store_dword v4, v3, {WS}, 0 offen sc1
    """)
    g.dbg_time(2, "v3", "v4")


class RowStage:
    vfr, vfl, vft, vtr, vmod = "v1", "v2", "v3", "v4", "v5"
    raw, st, ma, mb, mc, xs, part = 16, 32, 48, 64, 80, 96, 112

    def __init__(self, g):
        self.g = g

    def mod(self, dst, part):
        g = self.g
        g(f"s_mov_b32 s40, {MOD + part * 4096}")
        for u in range(2):
            for jh in range(2):
                g(f"buffer_load_dwordx4 {P4(dst + 8 * u + 4 * jh)}, {self.vmod}, {WS}, s40 offen offset:{512 * u + 256 * jh} sc1")

    def gate(self, part):
        self.mod(self.ma, part)
        self.g("s_waitcnt vmcnt(0)")
        for i in range(0, 16, 2): self.g(f"v_lshrrev_b32 v{self.ma + i}, 16, v{self.ma + i}")

    def setup(self):
        g = self.g
        g(f"""
        s_mov_b32 {S_SEG}, 0
        s_mov_b32 s29, 1
        s_mov_b32 s26, 0
        s_cmp_eq_u32 {S_WAVE}, 0
        s_cselect_b32 s31, 0, {OOB}
        s_lshl_b32 s40, {S_IDX}, 8
        s_lshl_b32 s41, {S_WAVE}, 15
        s_add_u32 s40, s40, s41
        v_and_b32 v6, 15, {LANE}
        v_lshl_add_u32 {self.vfr}, v6, 4, s40
        v_lshrrev_b32 v6, 4, {LANE}
        v_lshl_add_u32 {self.vfr}, v6, 11, {self.vfr}
        v_and_b32 v6, 3, {LANE}
        v_lshrrev_b32 v7, 5, {LANE}
        v_lshrrev_b32 v8, 2, {LANE}
        s_lshl_b32 s40, {S_WAVE}, 10
        v_lshl_add_u32 {self.vmod}, v8, 4, s40
        s_lshl_b32 s40, {S_IDX}, 13
        s_lshl_b32 s41, {S_WAVE}, 9
        s_add_u32 s40, s40, s41
        v_and_b32 v9, 31, {LANE}
        v_lshl_add_u32 v10, v9, 4, s40
        v_lshl_add_u32 v10, v7, 11, v10
        """)
        g.trace_setup(self.vtr)
        g.page_base("s27", self.raw, 1)
        g.flag_addr(self.vfl, FL_MOD + 32 * 128, 64)
        g.poll(self.vfl, "1", self.vft)

    def frags(self, op, reg, add):
        for u in range(2):
            self.g(f"s_add_u32 s40, s27, {add + u * TPART}\n{op} {P4(reg + 4 * u)}, {self.vfr}, {WS}, s40 offen sc1")

    def combine(self, nk, newer):
        g = self.g
        for k in range(nk):
            for u in range(2):
                g(f"s_waitcnt vmcnt({2 * (nk - k) - u - 1 + newer})")
                for i in range(8):
                    g(f"v_dot2c_f32_bf16 v{self.xs + 8 * u + i}, v{self.part + 8 * k + 4 * u + (i >> 1)}, v{self.ma + 8 * u + i}")
        g("s_nop 2")

    def ask(self):
        self.g(f"buffer_load_dword {self.vft}, {self.vfl}, {WS}, s31 offen sc1")

    def wait_upstream(self):
        g = self.g
        go = g.lab("go")
        g(f"""
        s_cmp_lg_u32 {S_WAVE}, 0
        s_cbranch_scc1 {go}
        s_waitcnt vmcnt(0)
        v_cmp_gt_i32 vcc, s29, {self.vft}
        s_cbranch_vccz {go}
        """)
        g.poll(self.vfl, "s29", self.vft, sleep=1)
        g(f"{go}:\ns_barrier")

    def advance(self, top):
        self.g(f"""
        s_add_u32 {S_SEG}, {S_SEG}, 1
        s_add_u32 s29, s29, 1
        s_add_u32 s26, s26, 65536
        {self.g.next_page('s27')}
        s_cmp_lt_u32 {S_SEG}, {NSEG}
        s_cbranch_scc1 {top}
        """)

    def token_sum(self, s):
        g = self.g
        g(f"v_add_f32 v{s}, v{s}, v{s + 1}")
        for sh in (4, 8): g(f"v_add_f32_dpp v{s}, v{s}, v{s} row_ror:{sh} row_mask:0xf bank_mask:0xf")
        for op in ("v_permlane16_swap_b32", "v_permlane32_swap_b32"):
            g(f"v_mov_b32 v{s + 1}, v{s}\n{op} v{s + 1}, v{s}\nv_add_f32 v{s}, v{s}, v{s + 1}")


def emit_ln2(g):
    r = RowStage(g)
    xs, st, raw = r.xs, r.st, r.raw
    g("L_LN2:")
    g.srd(XS, K_X, 4 << 20)
    r.setup()
    r.mod(r.mb, 3); r.mod(r.mc, 4); r.gate(2)
    for i in range(16): g(f"v_add_f32 v{r.mc + i}, 1.0, v{r.mc + i}")
    g.flag_addr(r.vfl, FL_WO, 32)
    g(f"""
    s_lshl_b32 s62, {S_IDX}, 7
    s_add_u32 s62, s62, {FL_LN2}
    s_lshl_b32 s30, {S_WAVE}, 11
    v_lshl_add_u32 v11, v6, 9, s30
    v_lshl_add_u32 v11, v8, 3, v11
    s_lshl_b32 s40, {S_WAVE}, 5
    s_add_u32 s40, s40, 8192
    v_lshl_add_u32 v12, v6, 3, s40
    v_lshlrev_b32 v13, 3, v6
    v_add_u32 v13, 8192, v13
    """)

    def xfetch(add):
        for v in range(2):
            g(f"s_add_u32 m0, s30, {v * 1024}\ns_add_u32 s40, s26, {add + v * 4096}\nbuffer_load_dwordx4 v10, {XS}, s40 offen nt lds")

    def xread():
        for u in range(2):
            for jh in range(2):
                g(f"ds_read_b64 {P2(raw + 8 + 4 * u + 2 * jh)}, v11 offset:{256 * u + 128 * jh}")
    xfetch(0)
    r.ask()
    g("s_waitcnt vmcnt(1)")
    xread()
    g("s_waitcnt lgkmcnt(0)")
    g.flush()
    g("L_LN2_top:")
    unpack(g, xs, raw + 8, 8)
    g.stamp(0)
    r.wait_upstream()
    g.stamp(1)
    for k in range(4): r.frags("buffer_load_dwordx4", r.part + 8 * k, PWO + 8 * k * TPART)
    xfetch(65536)
    r.combine(4, 2)
    g.stamp(2)
    g(f"v_pk_add_f32 {P2(st)}, {P2(xs)}, {P2(xs + 2)}")
    for k in range(2, 8): g(f"v_pk_add_f32 {P2(st)}, {P2(st)}, {P2(xs + 2 * k)}")
    r.token_sum(st)
    g(f"v_mul_f32 v{st}, {fbits(1 / 256)}, v{st}")
    d = r.part
    for k in range(8): g(f"v_pk_add_f32 {P2(d + 2 * k)}, {P2(xs + 2 * k)}, {P2(st)} op_sel_hi:[1,0] neg_lo:[0,1] neg_hi:[0,1]")
    g(f"v_pk_mul_f32 {P2(st + 2)}, {P2(d)}, {P2(d)}")
    for k in range(1, 8): g(f"v_pk_fma_f32 {P2(st + 2)}, {P2(d + 2 * k)}, {P2(d + 2 * k)}, {P2(st + 2)}")
    r.token_sum(st + 2)
    q = st + 4
    g(f"v_mov_b32 v{st + 1}, v{st + 2}\nds_write_b64 v12, {P2(st)}")
    pack(g, raw, xs, 8)
    g(f"""
    s_waitcnt lgkmcnt(0)
    s_barrier
    ds_read2_b64 {P4(q)}, v13 offset0:0 offset1:4
    ds_read2_b64 {P4(q + 4)}, v13 offset0:8 offset1:12
    """)
    r.frags("buffer_store_dwordx4", raw, X1)
    g(f"""
    s_waitcnt lgkmcnt(0)
    v_pk_add_f32 {P2(st + 2)}, {P2(q)}, {P2(q + 2)}
    v_pk_add_f32 {P2(st + 12)}, {P2(q + 4)}, {P2(q + 6)}
    v_pk_add_f32 {P2(st + 2)}, {P2(st + 2)}, {P2(st + 12)}
    v_mul_f32 v{st + 2}, 0x3e800000, v{st + 2}
    v_mul_f32 v{st + 3}, {fbits(1 / 256)}, v{st + 3}
    """)
    for k in range(4): g(f"v_sub_f32 v{q + 2 * k}, v{q + 2 * k}, v{st + 2}")
    for k in range(4): g(f"v_fmac_f32 v{st + 3}, v{q + 2 * k}, v{q + 2 * k}")
    g(f"""
    v_mul_f32 v{st + 3}, 0x3e800000, v{st + 3}
    v_add_f32 v{st + 3}, {fbits(1e-5)}, v{st + 3}
    v_rsq_f32 v{st + 12}, v{st + 3}
    v_sub_f32 v{st}, v{st}, v{st + 2}
    v_mul_f32 v{st}, v{st}, v{st + 12}
    """)
    for u in range(2):
        for k in range(4 * u, 4 * u + 4):
            g(f"v_pk_fma_f32 {P2(d + 2 * k)}, {P2(d + 2 * k)}, {P2(st + 12)}, {P2(st)} op_sel_hi:[1,0,0]")
        for k in range(4 * u, 4 * u + 4):
            g(f"v_pk_fma_f32 {P2(d + 2 * k)}, {P2(d + 2 * k)}, {P2(r.mc + 2 * k)}, {P2(r.mb + 2 * k)}")
        pack(g, d + 16 + 4 * u, d + 8 * u, 4)
        g(f"s_add_u32 s40, s27, {H2 + u * TPART}\nbuffer_store_dwordx4 {P4(d + 16 + 4 * u)}, {r.vfr}, {WS}, s40 offen sc1")
    g.stamp(3)
    g.trace_flush(st, drain=False)
    r.ask()
    g("s_waitcnt vmcnt(5)")
    xread()
    g("s_waitcnt vmcnt(1) lgkmcnt(0)\ns_barrier")
    g.signal("s62", "s29", 0)
    r.advance("L_LN2_top")
    g("s_branch L_END")


def emit_fin(g):
    r = RowStage(g)
    xs, raw = r.xs, r.raw
    PITCH = 544
    g("L_FIN:")
    g.srd(XS, K_OUT, 4 << 20)
    r.setup()
    r.gate(5)
    g.flag_addr(r.vfl, FL_F2, 24)
    g(f"""
    s_mul_i32 s30, {S_WAVE}, {4 * PITCH}
    v_mul_u32_u24 v11, {PITCH}, v6
    v_lshl_add_u32 v11, v8, 3, v11
    v_add_u32 v11, s30, v11
    v_mul_u32_u24 v12, {PITCH}, v7
    v_lshl_add_u32 v12, v9, 4, v12
    v_add_u32 v12, s30, v12
    """)
    r.ask()
    g.flush()
    g("L_FIN_top:")
    g.stamp(0)
    r.wait_upstream()
    g.stamp(1)
    r.frags("buffer_load_dwordx4", raw, X1)
    for k in range(3): r.frags("buffer_load_dwordx4", r.part + 8 * k, PF2 + 8 * k * TPART)
    g("s_waitcnt vmcnt(6)")
    unpack(g, xs, raw, 8)
    r.combine(3, 0)
    r.ask()
    g.stamp(2)
    pack(g, raw, xs, 8)
    for u in range(2):
        for jh in range(2):
            g(f"ds_write_b64 v11, {P2(raw + 4 * u + 2 * jh)} offset:{256 * u + 128 * jh}")
    for v in range(2): g(f"ds_read_b128 {P4(r.part + 4 * v)}, v12 offset:{2 * v * PITCH}")
    for v in range(2):
        g(f"s_add_u32 s40, s26, {v * 4096}\ns_waitcnt lgkmcnt({1 - v})\nbuffer_store_dwordx4 {P4(r.part + 4 * v)}, v10, {XS}, s40 offen{' nt' if g.opt.get('ont') else ''}")
    g.stamp(3)
    g.trace_flush(r.st, drain=False)
    r.advance("L_FIN_top")
    g.dbg_time(9, r.vfl, r.vft)
    g("s_branch L_END")


SM_SCALE = 128 ** -0.5 * LOG2E
```

```python
from common import *
from gstage import fbits
from light import SM_SCALE, P2, P4

S_SEL, S_MEM, S_O, S_VM, S_LX, S_MEML = "s26", "s27", "s28", "s29", "s36", "s37"
S_FORCE = "s51"
S_DP, S_DM = "s52", "s53"
STAGE = 0x20000
POS = [((p >> 1) & 3, (p & 1) + 2 * (p >> 3)) for p in range(16)]
bits = lambda m: [j for j in range(16) if int(m[1:], 16) >> j & 1]
POS_OF = {ab: p for p, ab in enumerate(POS)}


class Rec:
    def __init__(self, g):
        self.g = g
        v = self.v = Regs("v", 1, 128)
        self.A = v.get(16, 4)
        self.S = v.get(32, 4)
        self.acc = v.get(16, 4)
        self.RM = v.get(8, 4)
        self.pt = v.get(4, 4)
        self.ones = v.get(4, 4)
        self.vst = [f"v{v.get()}" for _ in range(4)]
        (self.vsr, self.vml, self.vmr, self.vidx, self.vchk, self.vtrig, self.vsnd, self.vvm, self.vtrc,
         self.vstep) = (f"v{v.get()}" for _ in range(10))

    def both(self, op, data, vaddr, soff, stmp="s40"):
        return [f"{op} {data}, {vaddr}, {WS}, {soff} offen sc1",
                f"s_xor_b32 {stmp}, {soff}, {LOCX}\n{op} {data}, {vaddr}, {WS}, {stmp} offen"]

    def same_side(self, op, data, vaddr, soff):
        a, b = self.g.lab("wt"), self.g.lab("wtd")
        return f"""
        s_cmp_eq_u32 {S_LX}, 0
        s_cbranch_scc1 {a}
        {op} {data}, {vaddr}, {WS}, {soff} offen
        s_branch {b}
        {a}:
        {op} {data}, {vaddr}, {WS}, {soff} offen sc1
        {b}:
        """

    def sparse_loader(self, rounds):
        g = self.g
        g(f"s_lshl_b32 s41, {S_WAVE}, 15")
        chunks = [(r, b) for r in rounds for b in range(4)]

        def issue(c):
            r, b = chunks[c]
            if b == 0 and r.get("setup"): r["setup"]()
            for p in range(4):
                for hi in range(2):
                    g(f"""
                    s_add_u32 m0, s41, {b * 8192 + p * 2048 + hi * 1024}
                    s_add_u32 s42, {r['sadd'](b)}, {r['off'](b, p, hi)}
                    buffer_load_dwordx4 {r['vsrc']}, {WW}, s42 offen{'' if g.opt.get('polq', 0) == 0 else ' nt'} lds
                    """)
        for c in range(3): issue(c)
        n = len(chunks)
        for c in range(n):
            g(f"s_waitcnt vmcnt({8 * min(2, n - 1 - c)}) lgkmcnt(0)\ns_barrier")
            if g.opt.get("ltimes") and c % 4 == 3:
                g(f"s_memrealtime s[{30 + 2 * (c // 4)}:{31 + 2 * (c // 4)}]")
            if c + 3 < n: issue(c + 3)
            for ins in chunks[c][0]["reads"](chunks[c][1]): g(ins)
            self.scalar_chores(c)
            if c >= n - 4:
                g("s_waitcnt lgkmcnt(0)\ns_barrier")
                for k in range(8):
                    g(f"ds_write_b128 {self.vsr}, {P4(self.S + 4 * k)} offset:{chunks[c][1] * 8192 + k * 1024}")
        g("s_waitcnt lgkmcnt(0)")
        if g.opt.get("ltimes"):
            for k in range(4): g(f"v_mov_b32 v{self.S + k}, s{30 + 2 * k}")
            g(f"v_mov_b32 v{self.pt}, {96 + 16 * self.role}\nbuffer_store_dwordx4 {P4(self.S)}, v{self.pt}, {DBG}, 0 offen\ns_waitcnt vmcnt(0)")

    def mem_round(self, vl, scol, dst, setup=None):
        vs = f"v{self.lv.get()}"
        self.g(f"v_add_u32 {vs}, {scol}, {vl}")
        off = lambda b, p, hi: (256 * b + 32 * (p >> 1) + (p & 1) + 8 * hi) * 8192
        if dst is None: d = lambda a, b, p: P2(self.S + 8 * a + 2 * p)
        else: d = lambda a, b, p: dst(POS_OF[a, b], p)
        reads = lambda b: [f"ds_read_b64_tr_b16 {d(a, b, p)}, {self.vtr[a]} offset:{b * 8192 + p * 2048}"
                           for a in range(4) for p in range(4)]
        return dict(setup=setup, vsrc=vs, off=off, reads=reads, sadd=lambda b: S_DP if b < 2 else S_DM)

    def addr_setup(self):
        g = self.g
        self.lv = Regs("v", self.A, self.A + 16)
        self.vtr = [f"v{self.lv.get()}" for _ in range(4)]
        vt = f"v{self.pt}"
        g.tr_lane(self.vtr[0], vt, S_WAVE)
        g(f"""
        s_lshl_b32 s40, {S_WAVE}, 15
        v_add_u32 {self.vtr[0]}, s40, {self.vtr[0]}
        v_lshl_add_u32 {self.vsr}, {LANE}, 4, s40
        s_lshl_b32 s40, {S_WAVE}, 12
        s_add_u32 s40, s40, {STAGE}
        v_lshl_add_u32 {self.vst[0]}, {LANE}, 4, s40
        s_lshr_b32 s54, {S_IDX}, 4
        s_lshl_b32 {S_DP}, s54, 22
        s_sub_u32 {S_DM}, 0, {S_DP}
        """)
        for a in range(1, 4):
            g(f"v_xor_b32 {self.vtr[a]}, {a << 15}, {self.vtr[0]}\nv_xor_b32 {self.vst[a]}, {a << 12}, {self.vst[0]}")
        vl = f"v{self.lv.get()}"
        g.src_lane(vl, vt, 8192, 2, r1=4, r0=16)
        g(f"s_lshl_b32 s40, {S_WAVE}, 19\nv_add_u32 {vl}, s40, {vl}")
        return vl

    def scalar_chores(self, c):
        g = self.g
        first, last = ((g.opt.get("p0", 9), g.opt.get("p1", 10)), (3, 3))[self.role]
        if not first <= c <= last: return
        skip = g.lab("chore")
        g(f"s_cmp_lg_u32 {S_WAVE}, 0\ns_cbranch_scc1 {skip}")
        if c == first:
            g.scalar_init_wait()
            g(f"""
            s_mov_b32 s46, 0xffff
            s_and_b32 s40, {S_IDX}, 3
            s_lshl_b32 s40, s40, 13
            s_lshr_b32 s43, {S_IDX}, 2
            s_lshl_b32 s43, s43, 10
            s_add_u32 s43, s43, s40
            s_add_u32 s43, s43, {PROBE + 512 * self.role}
            """)
        g(f"""
        s_waitcnt lgkmcnt(0)
        s_memtime s[64:65]
        s_waitcnt lgkmcnt(0)
        s_load_dword s68, s[4:5], s43 glc
        s_waitcnt lgkmcnt(0)
        s_memtime s[66:67]
        s_waitcnt lgkmcnt(0)
        s_sub_u32 s64, s66, s64
        s_min_u32 s46, s46, s64
        """)
        if c == last:
            g(f"""
            s_getreg_b32 s55, hwreg(HW_REG_XCC_ID)
            s_and_b32 s55, s55, 15
            s_lshl_b32 s46, s46, 8
            s_or_b32 s46, s46, s55
            s_add_u32 s40, {S_IDX}, {self.role * 32}
            s_lshl_b32 s40, s40, 7
            s_add_u32 s40, s40, {FL_TAB}
            """)
            g.signal("s40", "s46")
        g(f"{skip}:")

    def census(self):
        g = self.g
        t0, t1, t2 = (f"v{self.pt + k}" for k in range(3))
        g("s_getreg_b32 s55, hwreg(HW_REG_XCC_ID)\ns_and_b32 s55, s55, 15")
        g.flag_addr(t0, FL_TAB, 64)
        g.poll(t0, "0", t1, sleep=1)
        g(f"""
        v_and_b32 {t2}, 15, {t1}
        v_cmp_ne_u32 vcc, s55, {t2}
        s_lshl_b32 s40, s54, 4
        s_lshl_b32 s40, 0xffff, s40
        s_or_b32 s41, vcc_lo, vcc_hi
        s_and_b32 s40, s40, s41
        s_cselect_b32 {S_LX}, 0, {LOCX if g.opt.get('local', 1) else 0}
        """)
        show = lambda: g(f"""
            v_min_u32 {t0}, 3, {LANE}
            v_lshlrev_b32 {t0}, 2, {t0}
            s_mov_b64 exec, 15
            buffer_store_dword {t1}, {t0}, {DBG}, 0 offen offset:80
            s_mov_b64 exec, -1
            """)
        g.pick_sel(S_SEL, t1, t2, show if g.opt.get("times") else None)

    def common_setup(self):
        g = self.g
        t0, t1 = f"v{self.pt}", f"v{self.pt + 1}"
        self.census()
        g(f"""
        s_lshr_b32 s40, {S_WAVE}, 1
        s_mul_i32 s40, s40, {CH}
        s_and_b32 s41, {S_WAVE}, 1
        s_lshl_b32 s41, s41, 10
        s_add_u32 s40, s40, s41
        s_lshl_b32 s41, s54, 12
        s_add_u32 s40, s40, s41
        v_lshl_add_u32 {self.vml}, {LANE}, 4, s40
        v_xor_b32 {self.vmr}, 0x1000, {self.vml}
        v_and_b32 {t0}, 2, {LANE}
        v_cmp_eq_u32 vcc, 0, {t0}
        v_mov_b32 {t0}, 0xeeee
        v_mov_b32 {t1}, 0x4444
        v_cndmask_b32 {self.vidx}, {t0}, {t1}, vcc
        s_lshr_b32 s40, {S_IDX}, 2
        s_mul_i32 s40, s40, {CH}
        s_and_b32 s41, {S_IDX}, 3
        s_lshl_b32 s41, s41, 11
        s_add_u32 s47, s40, s41
        s_lshl_b32 s41, {S_WAVE}, 9
        s_add_u32 s47, s47, s41
        v_lshl_add_u32 {self.vvm}, {LANE}, 3, s47
        s_lshl_b32 s41, s54, 12
        s_add_u32 s40, s41, {TRIG}
        s_add_u32 s40, s40, {S_SEL}
        v_lshrrev_b32 {t0}, 2, {LANE}
        v_lshl_add_u32 {t0}, {t0}, 7, s40
        v_and_b32 {t1}, 3, {LANE}
        v_lshl_add_u32 {self.vtrig}, {t1}, {g.opt.get('fsh', 2)}, {t0}
        s_mov_b32 s57, s40
        s_cmp_eq_u32 {S_LX}, 0
        s_cselect_b32 s56, 1, {S_WAVE}
        s_and_b32 s41, {S_IDX}, 15
        s_lshl_b32 s41, s41, 7
        s_lshl_b32 s40, {S_WAVE}, {g.opt.get('fsh', 2)}
        s_add_u32 s40, s40, s41
        s_add_u32 s40, s40, {self.send_off}
        s_mov_b32 {S_SEG}, 0
        s_mov_b32 s60, 0
        s_mov_b32 s61, 0
        s_mov_b32 {S_FORCE}, -1
        """)
        g.lane0_addr(self.vsnd, "s40")
        for i in range(4): g(f"v_mov_b32 v{self.ones + i}, -1")
        g.trace_setup(self.vtrc)

    def warm_rings(self, items):
        g = self.g
        if not g.opt.get("rwarm", 1): return
        for k in range(4):
            g(f"s_mov_b32 {S_SEG}, {k}")
            g("\n".join(self.step_bases()))
            for va, so, x in items:
                g(f"s_xor_b32 s40, {so}, {x}\nbuffer_load_dword {self.vchk}, {va}, {WS}, s40 offen sc1")
        g(f"buffer_load_dword {self.vchk}, {self.vtrig}, {WS}, 0 offen offset:{2048 - self.send_off} sc1\ns_mov_b32 {S_SEG}, 0")

    def mem_slot(self, dst, add):
        return f"""s_add_u32 {dst}, {S_SEG}, {add + (MEMS >> 16)}
        s_and_b32 s40, {dst}, 0x28
        s_mul_i32 s40, s40, 0x900
        s_and_b32 s40, s40, 0x6000
        s_xor_b32 s40, s40, {S_SEL}
        s_lshl_b32 {dst}, {dst}, 16
        s_add_u32 {dst}, {dst}, s40"""

    def step_bases(self):
        return f"""
        {self.mem_slot(S_MEM, 0)}
        s_lshl_b32 {S_MEML}, {S_LX}, 1
        s_xor_b32 {S_MEML}, {S_MEM}, {S_MEML}
        s_and_b32 s40, {S_SEG}, 3
        s_lshl_b32 s40, s40, 18
        s_add_u32 {S_O}, s40, {S_SEL}
        s_lshr_b32 s40, s40, 5
        s_and_b32 s40, s40, 0x4000
        s_xor_b32 {S_O}, {S_O}, s40
        s_xor_b32 {S_VM}, {S_O}, 0x4000
        """.strip().split("\n")

    def trigger(self, off, own=False):
        g, t = self.g, self.pt
        top, done = g.lab("trig"), g.lab("trigd")
        ld = lambda k: f"buffer_load_dword v{t + k}, {self.vtrig}, {WS}, 0 offen offset:{off} sc1"
        g.flush()
        g(f"""
        {f"s_cmp_eq_u32 {S_LX}, 0" if own else "s_cmp_lg_u32 s56, 0"}
        s_cbranch_scc1 {done}
        {"s_mov_b64 exec, 0xffff" if own else ""}
        s_sleep {g.opt.get("vwait", 4)}
        {ld(0)}
        s_sleep 1
        {ld(1)}
        s_sleep 1
        {ld(2)}
        s_sleep 1
        {top}:
        """)
        g.budget()
        for k in range(4):
            g(f"""
            {ld((k + 3) % 4)}
            s_waitcnt vmcnt(3)
            v_cmp_gt_i32 vcc, {S_SEG}, v{t + k}
            {f's_cbranch_vccz {done}' if k < 3 else f's_cbranch_vccnz {top}'}
            """)
        g(f"""
        {done}:
        {"s_mov_b64 exec, -1" if own else "s_barrier"}
        """)

    def send(self):
        return [f"buffer_store_dword {self.vstep}, {self.vsnd}, {WS}, s57 offen"]

    def sread(self, pos):
        a, b = POS[pos]
        return [f"ds_read_b128 {P4(self.S + 8 * (pos & 3) + 4 * h)}, {self.vsr} offset:{b * 8192 + a * 2048 + h * 1024}" for h in range(2)]

    def aread(self, pos):
        a, b = POS[pos]
        return f"ds_read_b128 {P4(self.A + 4 * (pos & 3))}, {self.vst[a]} offset:{b * 1024}"

    def zero_acc(self):
        for i in range(0, 4 * self.nt, 2): self.g(f"v_mov_b64 {P2(self.acc + i)}, 0")

    def pre_project(self):
        self.zero_acc()
        for pos in range(4):
            for r in self.sread(pos): self.g(r)

    def rloads(self):
        return [f"buffer_load_dwordx4 {P4(self.RM + 4 * b)}, {self.vmr}, {WS}, {S_MEM} offen offset:{b * 2048} sc1" for b in range(2)]

    def project(self, nm, hooks):
        g, nt, A, RM = self.g, self.nt, self.A, self.RM
        q = []

        def ds(ins, tag):
            g(ins); q.append(tag)

        def wait_for(tags):
            last = max((i for i, t in enumerate(q) if t in tags), default=-1)
            if last >= 0:
                g(f"s_waitcnt lgkmcnt({min(15, len(q) - 1 - last)})")
                del q[:last + 1]

        def smf(pos, t):
            b = R("v", self.kept.get(pos, self.S + 8 * (pos & 3)), 8) if t == nt - 1 else self.wt(t, pos)
            a = RM + 4 * (pos - 8) if pos in (8, 9) else A + 4 * (pos & 3)
            return f"v_smfmac_f32_16x16x64_bf16 {P4(self.acc + 4 * t)}, {P4(a)}, {b}, {self.vidx}"

        def group(pos, fill):
            for i, t in enumerate(self.order):
                g(smf(pos, t))
                for _ in range(-(-len(fill) // (nt - i))):
                    ins, tag = fill.pop(0)
                    if tag: ds(ins, tag)
                    else: g(ins)

        def chk(x, first):
            return [f"v_max3_u32 {self.vchk}, v{x}, v{x + 1}, {'v%d' % (x + 2) if first else self.vchk}",
                    f"v_max3_u32 {self.vchk}, v{x + 2}, v{x + 3}, {self.vchk}"]
        wr = lambda x, b: (f"ds_write_b128 {self.vst[0]}, {P4(x)} offset:{b * 1024}", "w")
        sr = lambda p: [(r, ("S", p)) for r in self.sread(p)] if p < 16 and p not in self.kept else []
        ar = lambda p: [(self.aread(p), ("A", p))]

        g(f"L_{nm}_retry:")
        for b in range(2):
            g(f"buffer_load_dwordx4 {P4(A + 4 * b)}, {self.vml}, {WS}, {S_MEML} offen offset:{b * 2048} sc1\ns_nop 0")
        early = g.opt.get("rl", "g1") == "early"
        if early: g("\ns_nop 0\n".join(self.rloads()))
        g(f"s_waitcnt vmcnt({3 if early else 1}) lgkmcnt(0)")
        g.stamp(1)
        if g.opt.get("rl", "p0") == "p0":
            early = True
            g("\n".join(self.rloads()))
        group(0, [wr(A, 0)] + [(c, None) for c in chk(A, True)])
        g(f"s_waitcnt vmcnt({2 if early else 0})")
        ds(*wr(A + 4, 1))
        for c in chk(A + 4, False): g(c)
        g(f"v_cmp_eq_u32 vcc, -1, {self.vchk}\ns_cbranch_vccnz L_{nm}_bad")
        g("s_waitcnt lgkmcnt(0)\ns_barrier")
        q.clear()
        for p in (2, 3): ds(self.aread(p), ("A", p))
        group(1, [(r, None) for r in ([] if early else self.rloads())] + ar(4) + sr(4))
        rv = g.opt.get("rv", 7)
        for pos in range(2, 16):
            fill = sr(pos + 3)
            if pos + 3 < 8 or (pos >= rv + 2 and 9 < pos + 3 < 16): fill = ar(pos + 3) + fill
            wait_for({("A", pos), ("S", pos)})
            if pos == rv:
                g("s_waitcnt vmcnt(0)")
                self.rcheck = [wr(RM, 2), wr(RM + 4, 3)] + [(c, None) for c in chk(RM, True) + chk(RM + 4, False)]
                self.rcheck.append((f"v_cmp_eq_u32 vcc, -1, {self.vchk}", None))
                ds(*self.rcheck[0])
                group(pos, self.rcheck[1:] + fill)
                g(f"s_cbranch_vccnz L_{nm}_rbad\nL_{nm}_rok:")
                continue
            if pos == rv + 1:
                wait_for({"w"})
                g("s_barrier")
                fill = [x for p in range(10, pos + 4) for x in ar(p)] + fill
            group(pos, fill + hooks.get(pos, []))
        self.q = q

    def stream(self, nm, ring, load, smfs, lds, guards, shift, restart, extra={}, ctr="s61", first=99, idle=None, l1=False, again=False):
        g, W = self.g, len(ring)
        strict = load
        if l1: load = lambda j: strict(j).replace(" sc1", "")
        q, lq, stubs, fill = [], [], [], []
        g(f"L_{nm}_again:")
        nxt = min(first, W - 1)
        for j in range(nxt):
            g(load(j) + "\ns_nop 0"); q.append(load(j))
        if idle: idle(nxt)

        def put(n):
            for _ in range(min(n, len(fill))):
                ins, tag = fill.pop(0)
                g(ins)
                if tag is not None: lq.append(tag)

        def product(j, i):
            if i == len(smfs(j)) - 1 and j in lq:
                last = len(lq) - 1 - lq[::-1].index(j)
                g(f"s_waitcnt lgkmcnt({len(lq) - 1 - last})")
                del lq[:last + 1]
            assert j not in [t for _, t in fill]
            g(smfs(j)[i])
        n = len(smfs(0))
        for j in range(17):
            if j < 16:
                del q[:q.index(load(j))]
                g(f"s_waitcnt vmcnt({len(q) - 1})")
                if j == 0 and not again: g.stamp(self.first_stamp)
                if g.opt.get("inner") and j in (4, 8, 12) and not again: g.stamp(6 + j // 4)
                if j in guards: g(f"v_cmp_eq_u32 vcc, -1, v{ring[j % W]}")
            for i in range(n - shift, n if j else 0):
                product(j - 1, i)
                if i < n - 1: put(1)
            if j == 16: break
            if j in guards:
                stubs.append((j, list(q)))
                g(f"s_cbranch_vccnz L_{nm}_g{j}\nL_{nm}_ok{j}:")
            q.pop(0)
            upto = min(16, j + W, nxt + 2)
            vm = [load(k) for k in range(nxt, upto)] + extra.get(j, [])
            nxt = max(nxt, upto)
            q += vm
            alone = j in guards and g.opt.get("alone", 1) and n > 2
            if not alone: g("\n".join(vm))
            fill += lds(j)
            if not vm and not alone: put(1)
            for i in range(n - shift):
                product(j, i)
                if alone and i == 0:
                    g("\n".join(vm))
                    if not vm and len(fill) > 2: put(1)
                if i < n - shift - 1 or j + 1 not in guards: put(1)
        put(99)
        if again: return
        g(f"L_{nm}_join:")
        verdict = f"s_cbranch_vccnz L_{nm}_nan\nL_{nm}_done:"

        def cold():
            g(f"""
            L_{nm}_nan:
            s_cmp_eq_u32 {S_FORCE}, {S_SEG}
            s_cbranch_scc1 L_{nm}_done
            s_mov_b32 {S_FORCE}, {S_SEG}
            s_add_u32 {ctr}, {ctr}, 0x10000
            s_waitcnt vmcnt(0) lgkmcnt(0)
            """)
            for j0 in range(0, 16, 4):
                g(f"L_{nm}_v{j0}:")
                g.budget()
                for j in range(j0, j0 + 4): g(strict(j))
                g(f"v_mov_b32 {self.vchk}, 0\ns_waitcnt vmcnt(0)")
                for j in range(j0, j0 + 4):
                    x = ring[j % W]
                    g(f"v_max3_u32 {self.vchk}, v{x}, v{x + 1}, {self.vchk}\nv_max3_u32 {self.vchk}, v{x + 2}, v{x + 3}, {self.vchk}")
                g(f"v_cmp_eq_u32 vcc, -1, {self.vchk}\ns_cbranch_vccnz L_{nm}_v{j0}")
            restart()
            self.stream(nm + "S", ring, strict, smfs, lds, [], shift, None, extra, first=first, again=True)
            g.flush()
            g(f"s_branch L_{nm}_join")
            for j, qq in stubs:
                x = ring[j % W]
                g(f"L_{nm}_g{j}:")
                g.budget()
                g(f"""
                s_add_u32 {ctr}, {ctr}, {1 if j < 8 else 0x100}
                {strict(j)}
                s_waitcnt vmcnt(0)
                v_cmp_eq_u32 vcc, -1, v{x}
                s_cbranch_vccnz L_{nm}_g{j}
                """)
                rest = [ring[k % W] for k in range(j + 1, 16) if load(k) in qq]
                if rest and g.opt.get("smart", 1):
                    g(f"v_mov_b32 {self.vchk}, 0")
                    for a, b in zip(rest[::2], (rest + rest[-1:])[1::2]): g(f"v_max3_u32 {self.vchk}, v{a}, v{b}, {self.vchk}")
                    g(f"v_cmp_eq_u32 vcc, -1, {self.vchk}\ns_cbranch_vccz L_{nm}_ok{j}")
                for ins in qq[1:]: g(ins + (" sc1" if "load" in ins and "sc1" not in ins else "") + "\ns_nop 0")
                g(f"s_branch L_{nm}_ok{j}")
        return verdict, cold

    def bad_stubs(self, nm):
        g = self.g
        g(f"L_{nm}_bad:\ns_nop 7")
        g.budget()
        g("s_add_u32 s60, s60, 1")
        self.zero_acc()
        g.flush()
        g(f"s_branch L_{nm}_retry\nL_{nm}_rbad:")
        g.budget()
        g("s_add_u32 s60, s60, 0x10000\ns_waitcnt lgkmcnt(0)")
        for r in self.rloads(): g(r)
        g("s_waitcnt vmcnt(0)")
        for ins, _ in self.rcheck: g(ins)
        g(f"s_waitcnt lgkmcnt(0)\ns_cbranch_vccnz L_{nm}_rbad\ns_branch L_{nm}_rok")

    def report(self, slot):
        g = self.g
        if not g.opt.get("times"): return
        skip = g.lab("norep")
        g(f"""
        s_lshl_b32 s40, {S_IDX}, 2
        s_add_u32 s40, s40, {S_WAVE}
        s_cmp_lg_u32 s40, 0
        s_cbranch_scc1 {skip}
        v_mov_b32 v{self.pt}, {slot * 4}
        v_mov_b32 v{self.pt + 2}, s60
        v_mov_b32 v{self.pt + 3}, s61
        buffer_store_dwordx2 {P2(self.pt + 2)}, v{self.pt}, {DBG}, 0 offen
        s_lshl_b32 s40, {S_LX}, 4
        s_or_b32 s40, s40, {S_SEL}
        v_mov_b32 v{self.pt + 1}, s40
        v_mov_b32 v{self.pt}, {DBG_SEL}
        buffer_store_dword v{self.pt + 1}, v{self.pt}, {DBG}, 0 offen
        s_waitcnt vmcnt(0)
        {skip}:
        """)


class QK(Rec):
    role, nt, order, send_off = 0, 4, (0, 2, 1, 3), 2048

    def wt(self, t, pos, n=8, p=0):
        return wreg(t * 128 + pos * 8 + 2 * p, n)

    def emit(self):
        g, v = self.g, self.v
        VX = v.get(8, 4)
        VM, ONE = v.get(4, 4), v.get(4, 4)
        Z = v.get(10, 2)
        PA, PB, PC, PD = Z + 2, Z + 6, Z, Z + 4
        v16, vopub, vtw = (f"v{v.get()}" for _ in range(3))
        vtr = [f"v{v.get()}" for _ in range(4)]
        A, S, acc, RM = self.A, self.S, self.acc, self.RM
        t0, t1 = f"v{self.pt}", f"v{self.pt + 1}"
        NEG, MASK = self.vml, [f"s[{k}:{k + 1}]" for k in (8, 10, 16, 18, 42, 44, 52, 54)]
        g("L_QK:")
        vl = self.addr_setup()
        g(f"s_lshl_b32 s44, {S_IDX}, 8\ns_add_u32 s45, s44, 128")
        g.srd(WW, K_WQ, 8 << 20)
        dst = lambda t: (lambda pos, p: self.wt(t, pos, 2, p))
        self.sparse_loader([self.mem_round(vl, "s44", dst(0)), self.mem_round(vl, "s45", dst(1)),
                            self.mem_round(vl, "s44", dst(2), lambda: g.srd(WW, K_WK, 8 << 20)),
                            self.mem_round(vl, "s45", None)])
        g.dbg_time(1, t0, t1)
        self.common_setup()
        for r in range(10): g(f"v_mov_b32 v{Z + r}, 0")
        for i in range(4): g(f"v_mov_b32 v{ONE + i}, 0x3f803f80")
        TX = STAGE + 16384 + 2048
        g(f"""
        v_lshlrev_b32 {v16}, 4, {LANE}
        s_lshl_b32 s58, {S_WAVE}, 12
        s_add_u32 s40, s58, {TX}
        s_add_u32 s58, s58, {STAGE}
        v_lshrrev_b32 {t0}, 4, {LANE}
        v_bfe_u32 {t1}, {LANE}, 1, 2
        v_xor_b32 {t0}, {t0}, {t1}
        v_lshl_add_u32 {t0}, {t0}, 4, s40
        v_and_b32 {t1}, 15, {LANE}
        v_lshl_add_u32 {vtw}, {t1}, 6, {t0}
        v_bfe_u32 {t0}, {LANE}, 3, 2
        v_xor_b32 {t0}, {t0}, {LANE}
        v_lshl_add_u32 {vtr[0]}, {t0}, 4, s40
        v_bfe_u32 {t0}, {LANE}, 4, 1
        v_lshlrev_b32 {t0}, 1, {t0}
        v_and_b32 {t1}, 13, {LANE}
        v_or_b32 {t0}, {t0}, {t1}
        v_lshl_add_u32 {vopub}, {t0}, 4, s47
        v_lshrrev_b32 {t0}, 5, {LANE}
        v_lshl_add_u32 {vopub}, {t0}, 8, {vopub}
        v_and_b32 {t0}, 2, {LANE}
        v_cmp_eq_u32 vcc, 0, {t0}
        v_mov_b32 {t1}, {OOB}
        v_cndmask_b32 {vopub}, {vopub}, {t1}, vcc
        s_lshl_b32 s43, {S_IDX}, 2
        s_add_u32 s43, s43, {S_WAVE}
        s_and_b32 s46, {S_WAVE}, 1
        s_lshl_b32 s46, s46, 10
        s_mul_i32 s32, {S_IDX}, {THEAD}
        s_lshl_b32 s40, {S_WAVE}, 11
        s_add_u32 s32, s32, s40
        s_and_b32 s40, {S_SEL}, 0x2000
        s_xor_b32 s40, s40, {TOK + g.opt.get("far", 0) * 0x2000}
        s_add_u32 s32, s32, s40
        s_add_u32 s30, s32, s46
        s_add_u32 s30, s30, {3 * TPART}
        s_lshl_b32 s59, {S_IDX}, 7
        s_add_u32 s59, s59, {FL_QKV}
        s_lshl_b32 s62, {S_IDX}, 7
        s_add_u32 s62, s62, {FL_QK}
        s_mov_b32 s38, {fbits(SM_SCALE)}
        s_mov_b32 s39, s38
        """)
        for a in range(1, 4): g(f"v_xor_b32 {vtr[a]}, {a << 12}, {vtr[0]}")
        g(f"""
        v_readfirstlane_b32 s88, {self.vml}
        s_xor_b32 s41, s47, {4 * CH}
        v_min_u32 {t0}, 3, {LANE}
        v_lshl_add_u32 {self.vmr}, {t0}, 7, s41
        v_lshrrev_b32 {t0}, 4, {LANE}
        v_lshlrev_b32 {t0}, 2, {t0}
        v_and_b32 {t1}, 15, {LANE}
        v_sub_u32 {t0}, {t1}, {t0}
        s_lshr_b32 s41, s46, 6
        v_add_u32 {t0}, s41, {t0}
        v_and_b32 {self.vvm}, 0xfffffdff, {self.vvm}
        v_mov_b32 {NEG}, {fbits(-1e9 * 128 ** 0.5)}
        """)
        for k in range(8): g(f"v_cmp_le_i32 {MASK[k]}, {16 * (k >> 2) + (k & 3)}, {t0}")
        for a in range(1, 4): g(f"s_xor_b32 s{88 + a}, s88, {(a >> 1) * CH + (a & 1) * 1024}")
        ask = "s_load_dwordx2 s[100:101], s[4:5], s59 glc"

        def ready():
            top, have, skip = g.lab("ask"), g.lab("have"), g.lab("skip")
            g(f"""
            s_cmp_lg_u32 {S_WAVE}, 1
            s_cbranch_scc1 {skip}
            {top}:
            s_min_i32 s47, s100, s101
            s_cmp_ge_i32 s47, s33
            s_cbranch_scc1 {have}
            {ask}
            """)
            g.budget()
            g(f"""
            s_waitcnt lgkmcnt(0)
            s_branch {top}
            {have}:
            s_add_u32 s33, s33, 2
            s_min_u32 s33, s33, {NSEG}
            s_cmp_ge_i32 s47, s33
            s_cbranch_scc1 {skip}
            {ask}
            {skip}:
            s_barrier
            """)
        dma = lambda off: f"buffer_load_dwordx4 {v16}, {WS}, s31 offen offset:{off} sc1 lds"
        fetch = [f"s_add_u32 m0, s58, 16384\ns_add_u32 s31, s32, {TPART}\n{dma(0)}", dma(1024),
                 f"s_add_u32 m0, s58, 2048\ns_add_u32 s31, s32, {2 * TPART}\n{dma(0)}", dma(1024),
                 f"s_mov_b32 m0, s58\ns_add_u32 s31, s32, s46\n{dma(0)}", f"s_sub_u32 s31, s32, s46\n{dma(1024)}"]
        bases = self.step_bases() + [f"s_xor_b32 s34, {S_O}, 0x84000", f"s_xor_b32 s48, {S_O}, {LOCX}",
                                     "s_lshr_b32 s40, s46, 1", f"s_add_u32 {S_VM}, {S_VM}, s40", f"s_xor_b32 s35, {S_VM}, 512"]
        for a in range(4):
            bases += [f"s_add_u32 s{92 + a}, {S_MEML}, s{88 + a}", f"s_add_u32 s{96 + a}, {S_MEM}, s{88 + a}",
                      f"s_xor_b32 s{96 + a}, s{96 + a}, 0x1000"]
        allw = g.opt.get("fa", "red") not in ("bar", "pub")
        if allw:
            g(f"""
            v_lshrrev_b32 {t0}, 4, {LANE}
            v_lshl_add_u32 {t0}, {t0}, 7, s57
            v_and_b32 {t1}, 15, {LANE}
            v_lshl_add_u32 {self.vtrig}, {t1}, 2, {t0}
            """)
        self.warm_rings([(vopub, S_O, LOCX)])
        g.dbg_time(19, t0, t1)
        g("s_mov_b32 s33, 1\ns_mov_b64 s[100:101], 0")
        ready()
        g.dbg_time(14, t0, t1)
        g("\n".join(fetch + bases))
        g.phase("pq")
        g(f";@hot\nL_QK_top:\nv_mov_b32 {self.vstep}, {S_SEG}")
        self.pre_project()
        if not g.opt.get("inner"): g.stamp(6)
        g(f"""
        s_waitcnt lgkmcnt(0)
        s_and_b32 s40, {S_SEG}, {NSEG - 1}
        s_cselect_b32 s40, s56, 1
        s_cmp_lg_u32 s40, 0
        s_cbranch_scc1 L_QK_park
        v_mov_b32 {t0}, -1
        {"" if allw else "s_mov_b64 exec, 0xffff"}
        s_sleep {g.opt.get("qwait", 4)}
        L_QK_spin:
        """)
        g.budget()
        g("s_waitcnt vmcnt(40)")
        for k in range(4):
            g(f"""
            buffer_load_dword {t0}, {self.vtrig}, {WS}, 0 offen sc1
            s_nop {g.opt.get("spin", 3)}
            v_cmp_gt_i32 vcc, {S_SEG}, {t0}
            {"s_cbranch_vccz L_QK_rel" if k < 3 else "s_cbranch_vccnz L_QK_spin"}
            """)
        g("L_QK_rel:\ns_barrier\ns_mov_b64 exec, -1")
        g("L_QK_go:")
        g.stamp(0)
        fb = g.opt.get("fb", "cvt")
        vmload = (f"buffer_load_dwordx2 {P2(VM)}, {self.vvm}, {WS}, {S_VM} offen sc1\n"
                  f"buffer_load_dwordx2 {P2(VM + 2)}, {self.vvm}, {WS}, s35 offen sc1")
        vmchk = (f"v_max3_u32 {self.vchk}, v{VM}, v{VM + 1}, v{VM + 2}\nv_max_u32 {self.vchk}, {self.vchk}, v{VM + 3}\n"
                 f"v_cmp_eq_u32 vcc, -1, {self.vchk}")
        KX = [S, S + 8, S + 16, RM]
        kx = lambda a: [f"ds_read_b128 {P4(KX[a] + 4 * kt)}, {self.vst[a]} offset:{16384 + kt * 1024}" for kt in range(2)]
        ring = [A, A + 4, A + 8, A + 12, RM, RM + 4]
        QW = len(ring)

        def load(j):
            a, b = POS[j]
            return f"buffer_load_dwordx4 {P4(ring[j % QW])}, {v16}, {WS}, s{(92 if b < 2 else 96) + a} offen offset:{(b & 1) * 2048} sc1"

        def smfs(j):
            return [f"v_smfmac_f32_16x16x64_bf16 {P4(acc + 4 * t)}, {P4(ring[j % QW])}, "
                    f"{R('v', S + 8 * (j & 3), 8) if t == 3 else self.wt(t, j)}, {self.vidx}" for t in self.order]

        def lds(j):
            if j == 0: return []
            if j < 13: return [(r, j + 3) for r in self.sread(j + 3)]
            return [(r, -1) for r in {13: kx(0) + kx(3)[:1], 14: kx(1) + kx(3)[1:], 15: kx(2)}[j]]
        def report(n):
            for T in range(2): g(f"ds_read_b128 {P4(VX + 4 * T)}, {self.vst[0]} offset:{2048 + T * 1024}")
            g(f"s_cmp_lg_u32 {S_WAVE}, 0\ns_cbranch_scc1 L_QK_sigd\ns_mov_b32 s63, {S_SEG}\ns_waitcnt vmcnt({n})")
            g("s_atomic_smax s63, s[4:5], s62 glc\nL_QK_sigd:")
        self.first_stamp = 1
        verdict, cold = self.stream("QKM", ring, load, smfs, lds, bits(g.opt.get("qm", "xffff")), g.opt.get("qs", 2),
                                    lambda: (self.pre_project(), g("s_waitcnt lgkmcnt(0)")), ctr="s60", first=g.opt.get("qf", 5), idle=report, l1=g.opt.get('l1', 1))
        vmld = g.opt.get("vmld", "sc2")

        def point(name):
            if vmld == name: g(vmload)
            if fb == name: g("\n".join(self.send()))
        g.stamp(2)
        point("proj")
        T16 = self.pt
        for T in range(2):
            for t in (T, 2 + T):
                g(f"v_pk_add_f32 {P2(acc + 4 * t)}, {P2(acc + 4 * t)}, {P2(acc + 4 * t + 2)}")
            if T == 0: g(f"v_cmp_u_f32 vcc, v{acc}, v{acc + 1}")
            for j, t in ((1, T), (0, 2 + T)):
                g(f"v_cvt_pk_bf16_f32 v{T16 + 2 * T + j}, v{acc + 4 * t}, v{acc + 4 * t + 1}")
        fread = lambda a: "\n".join(f"ds_read_b64_tr_b16 {P2(A + 4 * a + 2 * T)}, {vtr[a]} offset:{8 * T}" for T in range(2))
        g(f"""
        ds_write_b128 {vtw}, {P4(T16)}
        {fread(0)}
        {verdict}
        s_waitcnt lgkmcnt(2)
        s_barrier
        {fread(1)}
        {fread(2)}
        {fread(3)}
        """)
        point("xch")
        S0, S1, SM = acc, acc + 4, acc + 8
        for a in range(4):
            g(f"s_waitcnt lgkmcnt({6 - 2 * a})")
            for d, x in ((S0, KX[a]), (S1, KX[a] + 4), (SM, A + 4 * a)):
                g(f"v_mfma_f32_16x16x32_bf16 {P4(d)}, {P4(x)}, {P4(A + 4 * a)}, {P4(d) if a else '0'}")
            if a == 0: point("sc1")
            if a == 1: point("sc2")
        g.stamp(3)
        point("score")
        m = acc + 12
        PX, O, L, OUT = self.pt, S + 24, acc + 12, acc
        fma = lambda r: f"v_pk_fma_f32 {P2(r)}, {P2(r)}, s[38:39], {P2(m)} op_sel_hi:[1,1,0] neg_lo:[0,0,1] neg_hi:[0,0,1]"
        up, dn = "quad_perm:[2,3,2,3] row_mask:0xf bank_mask:0xf", "quad_perm:[0,1,0,1] row_mask:0xf bank_mask:0xf"
        mix = lambda d, x: f"v_cndmask_b32_dpp v{d}, v{x}, v{d}, vcc {up}"
        g(f"""
        s_mov_b32 vcc_lo, 0xcccccccc
        s_mov_b32 vcc_hi, 0xcccccccc
        v_mov_b32 v{PX + 3}, s38
        v_max3_f32 v{m}, v{S0}, v{S0 + 1}, v{S0 + 2}
        v_max3_f32 v{m + 1}, v{S0 + 3}, v{S0 + 4}, v{S0 + 5}
        v_max3_f32 v{m}, v{m}, v{S0 + 6}, v{S0 + 7}
        v_max3_f32 v{m + 1}, v{m + 1}, v{S0 + 8}, v{S0 + 9}
        v_max_f32 v{m + 2}, v{m}, v{m + 1}
        v_max_f32 v{m + 3}, v{m}, v{m + 1}
        {mix(SM, SM + 1)}
        {mix(S0, S1)}
        v_permlane16_swap_b32 v{m + 2}, v{m + 3}
        v_max_f32 v{m}, v{m + 2}, v{m + 3}
        v_max_f32 v{m + 1}, v{m + 2}, v{m + 3}
        {mix(S0 + 1, S1 + 1)}
        {mix(S0 + 2, S1 + 2)}
        v_permlane32_swap_b32 v{m}, v{m + 1}
        v_max_f32 v{m}, v{m}, v{m + 1}
        {mix(S0 + 3, S1 + 3)}
        v_mul_f32_dpp v{m}, v{m}, v{PX + 3} {up}
        """)
        snd = lambda p: self.send()[0] if fb == p else ""
        g(f"""
        {fma(S0)}
        {fma(S0 + 2)}
        v_exp_f32 v{S0}, v{S0}
        v_exp_f32 v{S0 + 1}, v{S0 + 1}
        v_exp_f32 v{S0 + 2}, v{S0 + 2}
        v_cvt_pk_bf16_f32 v{PX}, v{S0}, v{S0 + 1}
        v_exp_f32 v{S0 + 3}, v{S0 + 3}
        v_fma_f32 v{SM}, v{SM}, s38, -v{m}
        v_cvt_pk_bf16_f32 v{PX + 1}, v{S0 + 2}, v{S0 + 3}
        v_mov_b32_dpp v{PX + 2}, v{PX} {dn}
        v_exp_f32 v{SM}, v{SM}
        v_mov_b32_dpp v{PX + 3}, v{PX + 1} {dn}
        s_nop 0
        v_mov_b32_dpp v{SM + 1}, v{SM} {dn}
        v_mfma_f32_16x16x32_bf16 {P4(L)}, {P4(ONE)}, {P4(PX)}, 0
        v_cvt_pk_bf16_f32 v{PA}, v{SM}, v{SM + 1}
        v_cvt_pk_bf16_f32 v{PB + 1}, v{SM}, v{SM + 1}
        s_waitcnt vmcnt(0)
        v_mfma_f32_16x16x32_bf16 {P4(O)}, {P4(VX)}, {P4(PX)}, 0
        v_max3_u32 {self.vchk}, v{VM}, v{VM + 1}, v{VM + 2}
        v_max_u32 {self.vchk}, {self.vchk}, v{VM + 3}
        v_mfma_f32_16x16x32_bf16 {P4(L)}, {P4(ONE)}, {P4(PA)}, {P4(L)}
        v_cmp_eq_u32 vcc, -1, {self.vchk}
        {snd("exp2")}
        v_mfma_f32_16x16x32_bf16 {P4(O + 4)}, {P4(VX + 4)}, {P4(PX)}, 0
        s_cbranch_vccnz L_QK_vbad
        L_QK_vok:
        {snd("cvt")}
        v_mfma_f32_16x16x32_bf16 {P4(O)}, {P4(VM)}, {P4(PA)}, {P4(O)}
        {snd("pv1")}
        v_mfma_f32_16x16x32_bf16 {P4(O + 4)}, {P4(VM)}, {P4(PB)}, {P4(O + 4)}
        """)
        point("pv")
        g(f"v_rcp_f32 v{L}, v{L}")
        point("rcp")
        for k in range(4):
            g(f"v_pk_mul_f32 {P2(O + 2 * k)}, {P2(O + 2 * k)}, {P2(L)} op_sel_hi:[1,0]")
        for k in range(4): g(f"v_cvt_pk_bf16_f32 v{OUT + k}, v{O + 2 * k}, v{O + 2 * k + 1}")
        g.stamp(4)
        g(f"buffer_store_dwordx4 {P4(OUT)}, {vopub}, {WS}, s48 offen")
        point("pub")
        Q, VP = [S + 24, S + 28, S, S + 8], [S + 4, S + 12]
        qread = lambda a: f"ds_read_b128 {P4(Q[a])}, {self.vst[a]} offset:{(a & 1) * 1024}"
        T0, T1, TM = acc + 4, acc + 8, acc + 12
        g(f"""
        {qread(0)}
        {qread(1)}
        s_add_u32 s32, s32, {TSEG}
        s_xor_b32 s32, s32, 0x2000
        s_add_u32 s33, {S_SEG}, 2
        s_min_u32 s33, s33, {NSEG}
        s_waitcnt lgkmcnt(0)
        buffer_store_dwordx4 {P4(OUT)}, {vopub}, {WS}, {S_O} offen sc1
        """)
        for a in range(4):
            if a > 1: g(f"s_waitcnt lgkmcnt({3 if a == 2 else 0})")
            for d, x in ((T0, KX[a]), (T1, KX[a] + 4), (TM, A + 4 * a)):
                g(f"v_mfma_f32_16x16x32_bf16 {P4(d)}, {P4(x)}, {P4(Q[a])}, {P4(d) if a else '0'}")
            if a < 2: g(f"{qread(a + 2)}\nds_read_b128 {P4(VP[a])}, {self.vst[1]} offset:{2048 + a * 1024}")
        ready()
        g.stamp(5)
        FF, M, PXT = self.ones, RM + 4, S + 16
        vm_ops = list(fetch)
        if g.opt.get("touch", 15) >= 10:
            vm_ops = [""] * (g.opt.get("touch", 15) - 10) + [f"buffer_load_dword {self.vchk}, {self.vmr}, {WS}, {S_O} offen sc1"] + vm_ops
        vm_ops += self.both("buffer_store_dwordx4", P4(FF), vopub, "s34")
        valu = [f"v_cndmask_b32 v{T0 + k}, {NEG}, v{T0 + k}, {MASK[k]}" for k in range(8)]
        valu += [f"v_max3_f32 v{M}, v{T0}, v{T0 + 1}, v{T0 + 2}", f"v_max3_f32 v{M + 1}, v{T0 + 3}, v{T0 + 4}, v{T0 + 5}",
                 f"v_max3_f32 v{M}, v{M}, v{T0 + 6}, v{T0 + 7}", f"v_max3_f32 v{M + 1}, v{M + 1}, v{T0 + 8}, v{T0 + 9}",
                 f"v_max_f32 v{M + 2}, v{M}, v{M + 1}", f"v_max_f32 v{M + 3}, v{M}, v{M + 1}",
                 f"v_permlane16_swap_b32 v{M + 2}, v{M + 3}",
                 f"v_max_f32 v{M}, v{M + 2}, v{M + 3}", f"v_max_f32 v{M + 1}, v{M + 2}, v{M + 3}",
                 f"v_permlane32_swap_b32 v{M}, v{M + 1}", f"v_max_f32 v{M}, v{M}, v{M + 1}", f"v_mul_f32 v{M}, s38, v{M}"]
        valu += [f"v_pk_fma_f32 {P2(T0 + 2 * k)}, {P2(T0 + 2 * k)}, s[38:39], {P2(M)} op_sel_hi:[1,1,0] neg_lo:[0,0,1] neg_hi:[0,0,1]" for k in range(5)]
        valu += [f"v_exp_f32 v{T0 + k}, v{T0 + k}" for k in range(10)]
        valu += [f"v_cvt_pk_bf16_f32 v{PXT + k}, v{T0 + 2 * k}, v{T0 + 2 * k + 1}" for k in range(4)]
        valu += [f"v_cvt_pk_bf16_f32 v{d}, v{TM}, v{TM + 1}" for d in (PA, PB + 1)]
        gap = g.opt.get("hkgap", 2)
        for i, ins in enumerate(valu):
            if i % gap == 0 and vm_ops: g(vm_ops.pop(0))
            g(ins)
        for op in vm_ops: g(op)
        if not g.opt.get("inner"): g.stamp(7)
        LT = S + 20
        g(f"s_add_u32 {S_SEG}, {S_SEG}, 1\ns_xor_b32 s41, s30, 2048")
        salu = list(bases)
        mm = [(LT, ONE, PXT, 0)] + [(acc + 4 * k, x, PXT, 0) for k, x in enumerate((VX, VX + 4, VP[0], VP[1]))]
        mm += [(LT, ONE, PA, 1)] + [(acc + 4 * k, VM, p, 1) for k, p in enumerate((PA, PB, PC, PD))]
        for d, x, y, c in mm:
            g(f"v_mfma_f32_16x16x32_bf16 {P4(d)}, {P4(x)}, {P4(y)}, {P4(d) if c else '0'}")
            for _ in range(3):
                if salu: g(salu.pop(0))
        g("\n".join(salu + [f"v_rcp_f32 v{LT}, v{LT}"]))
        for h, so in enumerate(("s30", "s41")):
            for k in range(4 * h, 4 * h + 4): g(f"v_pk_mul_f32 {P2(acc + 2 * k)}, {P2(acc + 2 * k)}, {P2(LT)} op_sel_hi:[1,0]")
            for k in range(4 * h, 4 * h + 4): g(f"v_cvt_pk_bf16_f32 v{A + k}, v{acc + 2 * k}, v{acc + 2 * k + 1}")
            g(f"buffer_store_dwordx4 {P4(A + 4 * h)}, {v16}, {WS}, {so} offen sc1")
        g(f"s_add_u32 s30, s30, {TSEG}\ns_xor_b32 s30, s30, 0x2000")
        if not g.opt.get("inner"): g.stamp(8)
        g.trace_flush(S + 24, drain=False, back=1)
        g.flush()
        g(f"""
        s_branch L_QK_top
        ;@end
        L_QK_park:
        s_waitcnt vmcnt(0)
        s_cmp_lt_u32 {S_SEG}, {NSEG}
        s_cbranch_scc1 L_QK_rel
        s_barrier
        """)
        g.signal("s62", S_SEG, 0)
        g.dbg_time(8, t0, t1)
        self.report(10)
        g("s_branch L_END")
        cold()
        g("L_QK_vbad:")
        g.budget()
        g(f"""
        s_add_u32 s61, s61, 1
        {vmload}
        s_waitcnt vmcnt(0)
        {vmchk}
        s_cbranch_vccnz L_QK_vbad
        s_branch L_QK_vok
        """)


class VO(Rec):
    role, nt, order, send_off = 1, 2, (0, 1), 0

    def wt(self, t, pos, n=8, p=0):
        return R("v", 128 + pos * 8 + 2 * p, n)

    def wo(self, pos, T, n=8, p=0):
        return R("a", (2 * pos + T) * 8 + 2 * p, n)

    def emit(self):
        g, v = self.g, self.v
        A, S, acc, RM = self.A, self.S, self.acc, self.RM
        W = g.opt.get("owin", 7)
        extra = v.get(4 * (W - 6), 4) if W > 6 else 0
        ring = [A, A + 4, A + 8, A + 12, RM, RM + 4] + [extra + 4 * k for k in range(W - 6)]
        T4 = v.get(8, 4)
        vrw, vrr, vmpub = (f"v{v.get()}" for _ in range(3))
        vo = [f"v{v.get()}" for _ in range(4)]
        t0, t1, t2 = f"v{self.pt}", f"v{self.pt + 1}", f"v{self.pt + 2}"
        g("L_VO:")
        vl = self.addr_setup()
        g(f"s_lshl_b32 s44, {S_IDX}, 8\ns_add_u32 s45, s44, 128")
        g.srd(WW, K_WV, 8 << 20)
        self.sparse_loader([self.mem_round(vl, "s44", lambda pos, p: self.wt(0, pos, 2, p)), self.mem_round(vl, "s45", None)])
        g(f"s_lshr_b32 s40, {S_IDX}, 1\ns_lshl_b32 s40, s40, 2")
        g.flag_addr(t0, FL_WOF, 4, "s40")
        g.poll(t0, "1", t1, sleep=1)
        g(f"""
        s_lshl_b32 s40, {S_IDX}, 18
        s_lshl_b32 s41, {S_WAVE}, 15
        s_add_u32 s40, s40, s41
        v_lshl_add_u32 {t0}, {LANE}, 4, s40
        s_add_u32 s50, {S_IDX}, {S_WAVE}
        s_and_b32 s50, s50, {g.opt.get('rot', 3)}
        s_lshl_b32 s41, s54, 5
        s_add_u32 s41, s41, s50
        s_lshl_b32 s41, s41, 12
        """)
        for pos in range(16):
            g(f"s_xor_b32 s40, s41, {((pos >> 3) << 17) + (pos & 7) * 4096}\ns_add_u32 s40, s40, {WOF}")
            for k in range(4):
                g(f"buffer_load_dwordx4 {R('a', pos * 16 + 4 * k, 4)}, {t0}, {WS}, s40 offen offset:{k * 1024} sc1")
            if pos >= 8: g("s_waitcnt vmcnt(32)")
        g.dbg_time(7, t0, t1)
        g.tlb_warm(t1, t2)
        self.common_setup()
        va, vn = f"v{A}", f"v{A + 1}"
        allw = g.opt.get("fa", "red") not in ("bar", "pub")
        g(f"""
        s_mul_i32 s40, {S_WAVE}, {CH}
        s_and_b32 s41, s50, 3
        s_lshl_b32 s41, s41, 10
        s_add_u32 s40, s40, s41
        v_lshl_add_u32 {vo[0]}, {LANE}, 4, s40
        v_xor_b32 {vo[1]}, 0x400, {vo[0]}
        v_xor_b32 {vo[2]}, 0x800, {vo[0]}
        v_xor_b32 {vo[3]}, 0xc00, {vo[0]}
        s_mul_i32 s58, s54, {4 * CH}
        s_and_b32 s41, s50, 4
        s_lshl_b32 s41, s41, 10
        s_add_u32 s58, s58, s41
        s_bfe_u32 s40, {S_IDX}, 0x20002
        s_lshl_b32 s40, s40, 7
        s_and_b32 s41, {S_IDX}, 3
        s_lshl_b32 s41, s41, {4 if allw else 2}
        s_add_u32 s40, s40, s41
        s_lshl_b32 s41, {S_WAVE}, 2
        s_add_u32 s41, s41, s40
        s_cmp_eq_u32 {S_WAVE}, 0
        s_cselect_b32 s40, s40, {"s41" if allw else OOB}
        s_mov_b64 exec, 1
        v_mov_b32 {self.vsnd}, s40
        s_mov_b64 exec, -1
        s_mul_i32 s40, {S_WAVE}, {512 if g.opt.get("own", 1) else 0}
        v_add_u32 {self.vtrig}, s40, {self.vtrig}
        s_lshl_b32 s40, {S_WAVE}, 10
        s_add_u32 s40, s40, {STAGE + 16384}
        v_lshl_add_u32 {vrw}, {LANE}, 4, s40
        s_and_b32 s40, {S_WAVE}, 1
        s_lshl_b32 s40, s40, 3
        v_bfe_u32 {va}, {LANE}, 2, 3
        v_add_u32 {va}, s40, {va}
        s_lshr_b32 s40, {S_WAVE}, 1
        s_lshl_b32 s40, s40, 3
        v_and_b32 {vn}, 3, {LANE}
        v_add_u32 {vn}, s40, {vn}
        v_bfe_u32 {t0}, {va}, 1, 1
        v_lshl_add_u32 {vn}, {t0}, 2, {vn}
        v_lshrrev_b32 {t0}, 2, {va}
        v_and_b32 {t1}, 1, {va}
        v_lshl_add_u32 {t2}, {t0}, 4, {vn}
        v_lshlrev_b32 {t2}, 4, {t2}
        v_lshl_add_u32 {t2}, {t1}, 3, {t2}
        v_add_u32 {vrr}, {STAGE + 16384}, {t2}
        s_bfe_u32 s41, {S_IDX}, 0x10002
        s_mul_i32 s41, s41, {CH}
        s_lshr_b32 s40, {S_IDX}, 3
        s_lshl_b32 s40, s40, 11
        s_add_u32 s40, s40, s41
        s_and_b32 s41, {S_IDX}, 3
        s_lshl_b32 s41, s41, 9
        s_add_u32 s40, s40, s41
        s_lshl_b32 s41, {S_WAVE}, 7
        s_add_u32 s40, s40, s41
        v_lshl_add_u32 {vmpub}, {LANE}, 2, s40
        s_mov_b32 exec_lo, 0
        v_mov_b32 {vmpub}, {OOB}
        s_mov_b64 exec, -1
        """)
        self.kept = {12: v.get(8, 4)} if g.opt.get("kept", 1) else {}
        for pos, r in self.kept.items():
            a, b = POS[pos]
            for h in range(2): g(f"ds_read_b128 {P4(r + 4 * h)}, {self.vsr} offset:{b * 8192 + a * 2048 + h * 1024}")
        g(f"s_mov_b32 s59, {OOB}")
        self.warm_rings([(self.vvm, S_VM, 0), (vmpub, S_MEM, LOCM)])
        self.pre_project()
        g.flush()
        g.phase("pv")
        g(";@hot\nL_VO_top:")
        g("\n".join(self.step_bases()))
        if g.opt.get("vdelay", 5): g(f"s_sleep {g.opt.get('vdelay', 5)}")
        g.stamp(0)
        self.project("VO", {})
        g.stamp(2)
        for T in range(2): g(f"v_pk_add_f32 {P2(acc + 4 * T)}, {P2(acc + 4 * T)}, {P2(acc + 4 * T + 2)}")
        for T in range(2): g(f"v_cvt_pk_bf16_f32 v{T4 + T}, v{acc + 4 * T}, v{acc + 4 * T + 1}")
        oa = acc + 8
        g(self.same_side("buffer_store_dwordx2", P2(T4), self.vvm, S_VM))
        g(f"""
        s_cmp_ge_u32 {S_SEG}, {NSEG - 1}
        s_cbranch_scc1 L_VO_end
        s_add_u32 s42, {S_O}, s58
        s_xor_b32 s30, s42, {S_LX}
        s_xor_b32 s31, s30, 4096
        s_xor_b32 s32, s42, {4 * CH}
        s_xor_b32 s48, s32, 4096
        s_add_u32 s41, {S_SEG}, 1
        v_mov_b32 {self.vstep}, s41
        {self.mem_slot("s33", 1)}
        s_xor_b32 s49, s33, {LOCM}
        {self.mem_slot("s34", 3)}
        s_cmp_lt_u32 {S_SEG}, {NSEG - 3}
        s_cselect_b32 s34, s34, {OOB}
        s_xor_b32 s41, s34, {LOCM}
        {f"buffer_load_dword v{RM}, {vmpub}, {WS}, s59 offen sc1" if g.opt.get("mt", 1) else ""}
        buffer_store_dword v{self.ones}, {vmpub}, {WS}, s34 offen sc1
        buffer_store_dword v{self.ones}, {vmpub}, {WS}, s41 offen{" sc1" if g.opt.get("mt", 1) else ""}
        s_mov_b32 s59, s41
        s_xor_b32 s35, {S_VM}, 0x84000
        """)
        g(self.same_side("buffer_store_dwordx2", P2(self.ones), self.vvm, "s35"))
        g.trace_flush(T4 + 4, drain=False)
        for i in range(0, 8, 2): g(f"v_mov_b64 {P2(oa + i)}, 0")
        self.pre_project()
        self.trigger(2048, g.opt.get("own", 1))
        g.stamp(3)
        load = lambda j: f"buffer_load_dwordx4 {P4(ring[j % W])}, {vo[j & 3]}, {WS}, {('s30', 's31', 's32', 's48')[j >> 2]} offen sc1"
        smf = lambda j, T: f"v_smfmac_f32_16x16x64_bf16 {P4(oa + 4 * T)}, {P4(ring[j % W])}, {self.wo(j, T)}, {self.vidx}"
        fa = g.opt.get("fa", "red")
        self.first_stamp = 4
        lst = lambda k, d: [int(x) for x in str(g.opt.get(k, d)).split("_") if x != "n"]
        zero = lambda: [g(f"v_mov_b64 {P2(oa + i)}, 0") for i in range(0, 8, 2)]
        verdict, cold = self.stream("VOO", ring, load, lambda j: [smf(j, 0), smf(j, 1)], lambda j: [],
                                    bits(g.opt.get("om", "xffff")), 1, zero, {fa: self.send()}, first=g.opt.get("of", 6))
        g.stamp(5)
        if fa == "end": g("\n".join(self.send()))
        g(f"""
        v_add_f32 v{T4}, v{oa}, v{oa + 2}
        v_add_f32 v{T4 + 2}, v{oa + 1}, v{oa + 3}
        v_add_f32 v{T4 + 1}, v{oa + 4}, v{oa + 6}
        v_add_f32 v{T4 + 3}, v{oa + 5}, v{oa + 7}
        ds_write_b128 {vrw}, {P4(T4)}
        v_cmp_u_f32 vcc, v{T4}, v{T4 + 2}
        {verdict}
        """)
        if fa == "red": g("\n".join(self.send()))
        g(f"""
        s_waitcnt lgkmcnt(0)
        s_barrier
        """)
        g(f"ds_read2st64_b64 {P4(T4)}, {vrr} offset0:0 offset1:2\nds_read2st64_b64 {P4(T4 + 4)}, {vrr} offset0:4 offset1:6")
        if fa == "bar": g("\n".join(self.send()))
        g(f"""
        s_waitcnt lgkmcnt(1)
        v_pk_add_f32 {P2(T4)}, {P2(T4)}, {P2(T4 + 2)}
        s_waitcnt lgkmcnt(0)
        v_pk_add_f32 {P2(T4 + 4)}, {P2(T4 + 4)}, {P2(T4 + 6)}
        v_pk_add_f32 {P2(T4)}, {P2(T4)}, {P2(T4 + 4)}
        v_cvt_pk_bf16_f32 v{T4}, v{T4}, v{T4 + 1}
        """)
        g.stamp(6)
        g(f"""
        buffer_store_dword v{T4}, {vmpub}, {WS}, s49 offen
        buffer_store_dword v{T4}, {vmpub}, {WS}, s33 offen sc1
        """)
        if fa == "pub": g("\n".join(self.send()))
        g(f"s_add_u32 {S_SEG}, {S_SEG}, 1")
        g.flush()
        g("s_branch L_VO_top\n;@end\nL_VO_end:")
        self.report(12)
        g("s_branch L_END")
        self.bad_stubs("VO")
        cold()


def emit_wof(g):
    g("L_WOF:")
    g.srd(WW, K_WO, 8 << 20)
    g.src_lane("v1", "v2", 2048, 64, r1=4, r0=1)
    g.tr_lane("v4", "v2", "0")
    g(f"""
    s_and_b32 s43, {S_IDX}, 3
    s_lshl_b32 s43, s43, 2
    s_add_u32 s43, s43, {S_WAVE}
    s_lshr_b32 s44, {S_IDX}, 2
    s_lshl_b32 s40, s43, 19
    s_lshl_b32 s41, s44, 7
    s_add_u32 s40, s40, s41
    v_add_u32 v1, s40, v1
    s_lshl_b32 s41, {S_WAVE}, 15
    v_add_u32 v4, s41, v4
    s_lshl_b32 s40, s44, 19
    s_lshl_b32 s45, s43, 14
    s_add_u32 s40, s40, s45
    v_lshl_add_u32 v3, {LANE}, 4, s40
    """)
    for k in range(1, 4): g(f"v_xor_b32 v{4 + k}, {k << 5}, v4")
    for f in range(4):
        for p in range(4):
            for hi in range(2):
                g(f"""
                s_add_u32 m0, s41, {f * 8192 + p * 2048 + hi * 1024}
                s_mov_b32 s42, {(128 * (f >> 1) + 32 * (f & 1) + 16 * (p >> 1) + 2 * (p & 1) + 8 * hi) * 2048}
                buffer_load_dwordx4 v1, {WW}, s42 offen nt lds
                """)
    for f in range(4):
        g(f"s_waitcnt vmcnt(24)")
        for sl in range(4):
            for p in range(4):
                g(f"ds_read_b64_tr_b16 {P2(8 + 32 * f + 8 * sl + 2 * p)}, v{4 + sl} offset:{f * 8192 + p * 2048}")
        for sl in range(4):
            g(f"s_mov_b32 s42, {WOF + (sl >> 1) * 262144 + f * 4096}\ns_waitcnt lgkmcnt({12 - 4 * sl})")
            for h in range(2):
                g(f"buffer_store_dwordx4 {P4(8 + 32 * f + 8 * sl + 4 * h)}, v3, {WS}, s42 offen offset:{(sl & 1) * 2048 + h * 1024} sc1")
    g.wait_init("v1", "v2")
    g(f"s_barrier\ns_lshl_b32 s40, {S_IDX}, 7\ns_add_u32 s40, s40, {FL_WOF}")
    g.signal("s40", "1", 0)
    g("s_branch L_LN1")
```

```python
from asm import Asm, Regs, R

NAME = "adaLN_cond__memory_aug_recurrent_mem_tr__glu_gated_swiglu__prompt"
NSEG = 64
LAYOUTS = {
    0: ("RRRR", "Q Wi Wm Li", "RRRR", "Q Wi Wm Ni", "Q Q Fw Fw", "Q Fw Fw Dm", "Q Q Fw Fw", "Q Fw Dw Dm"),
    1: ("RRRR", "Wi Wi Wm Li", "RRRR", "Wi Dm Dm Nm", "Q Q Fw Fw", "Q Q Fw Fw", "Q Q Fw Fw", "Q Q Fw Dw"),
    2: ("RRRR", "Fm Fm Fm Lm", "RRRR", "Di Di Di Ni", "Q Q Q Q", "Ww Ww Ww Ww", "Q Q Q Q", "Fw Fw Fw Fw"),
    4: ("RRRR", "Ww Ww Fw Lw", "RRRR", "Ww Ww Fw Nw", "Q Q Fm Di", "Q Q Fm Di", "Q Q Fm Di", "Q Q Fm Fi"),
    5: ("RRRR", "Wi Wi Fm Lm", "RRRR", "Wi Wi Fm Nm", "Q Q Q Q", "Fw Fw Dw Dw", "Q Q Q Q", "Fw Fw Fw Dw"),
    6: ("RRRR", "Ww Ww Fw Lw", "RRRR", "Wi Wi Fi Ni", "Q Q Q Fm", "Q Q Q Fm", "Q Q Fm Dm", "Fw Fw Dw Dw"),
    7: ("RRRR", "Q Q Q Q", "RRRR", "Q Q Q Q", "Ww Ww Ww Ww", "Fw Fw Fw Fw", "Fm Fm Fm Lm", "Di Di Di Ni"),
    8: ("RRRR", "Q Q Wi Wi", "RRRR", "Q Q Wi Wi", "Q Q Q Q", "Fw Fw Fw Fw", "Fm Fm Fm Lm", "Dw Dw Dw Nw"),
    9: ("RRRR", "Q Q Q Q", "RRRR", "Wi Wi Wi Wi", "Q Q Q Q", "Fw Fw Fw Fw", "Fm Fm Fm Lm", "Dw Dw Dw Nw"),
    10: ("RRRR", "Fw Fw Fw Lw", "RRRR", "Dw Dw Dw Nw", "Q Q Q Q", "Wi Wi Wi Wi", "Q Q Q Q", "Fm Fm Fm Fm"),
    11: ("RRRR", "Fm Fm Fm Lm", "RRRR", "Dw Dw Dw Nw", "Q Q Q Q", "Wi Wi Wi Wi", "Q Q Q Q", "Fw Fw Fw Fw"),
    3: ("RRRR", "Q Wi Wi Lm", "RRRR", "Q Wi Wi Nm", "Q Q Fw Fw", "Q Fw Fw Dm", "Q Q Fw Fw", "Q Fw Dw Dm"),
}


def layout(k):
    free = {"Q": [4, 5, 6, 7, 12, 13, 14, 15], "W": [16, 17, 18, 19], "F": list(range(20, 27)), "L": [27], "D": [28, 29, 30],
            "N": [31], "w": list(range(16, 24)), "m": [24, 25, 26, 27], "i": [28, 29, 30, 31]}
    role, job = [], []
    for x, row in enumerate(LAYOUTS[k]):
        if row == "RRRR":
            role.append([4 * x + o for o in range(4)]); job.append(role[-1]); continue
        role.append([free[e[0]].pop(0) for e in row.split()])
        job.append([free[e[1]].pop(0) if len(e) > 1 else r for e, r in zip(row.split(), role[-1])])
    assert not any(free.values())
    return role, job


K_X, K_MEM0, K_WQ, K_WK, K_WV, K_WO, K_W1, K_W3, K_W2, K_C, K_WMOD, K_OUT, K_DBG, K_WS = (
    0, 8, 16, 24, 32, 40, 64, 72, 80, 88, 96, 104, 112, 120)

WS_SKIP = 4 << 20
CH = 0x8000
O_RING = 0x000000
TRIG = 0x140000
PROBE = TRIG + CH
LOCX = 0x2000
FLG = 0x150000
FL_MOD = FLG
FL_LN1 = FL_MOD + 96 * 128
FL_QKV = FL_LN1 + 64 * 128
FL_QK = FL_QKV + 64 * 128
FL_WO = FL_QK + 32 * 128
FL_LN2 = FL_WO + 32 * 128
FL_F1 = FL_LN2 + 8 * 128
FL_F2 = FL_F1 + 56 * 128
FL_TAB = FL_F2 + 24 * 128
FL_WOF = FL_TAB + 64 * 128
assert FL_WOF + 64 * 128 <= 0x180000
MOD = 0x180000
MEMS = 0x200000
LOCM = 0x4000
H1 = 0x600000
WOF = 0xA00000
TOK = 0x1400000
TSEG, THEAD, TPART = 1 << 21, 1 << 16, 1 << 14
PWO = 0
PF2 = 32 * TPART
H2 = 56 * TPART
X1 = 64 * TPART
ACT = 72 * TPART
TRACE = 0x9800000
TIMES = 0x9C00000
WS_SIZE = 0x9C08000

OOB = 0x7FFFFF00
LDS_BYTES = 163840
BUDGET = 300000

WS, WW, DBG, XS = "s[4:7]", "s[8:11]", "s[12:15]", "s[16:19]"
S_WAVE, S_IDX, S_X, S_R, S_TMO, S_SEG = "s20", "s21", "s22", "s23", "s24", "s25"
LANE = "v0"
DBG_SEL, DBG_INIT = 16 * 4, 32 * 4


class Gen(Asm):
    def __init__(self, opt):
        super().__init__()
        self.opt = opt
        self.uid = 0

    def lab(self, base):
        self.uid += 1
        return f"L{base}_{self.uid}"

    def phase(self, key):
        if key not in self.opt: return
        l = self.lab("ph")
        self.flush()
        self(f"s_branch {l}")
        self.raw(".p2align 6")
        self.raw(f".fill {self.opt[key]}, 4, 0xbf800000")
        self(f"{l}:")

    def srd(self, which, karg, size):
        b = int(which[2:which.index(":")])
        self(f"""
        s_load_dwordx2 s[{b}:{b + 1}], s[0:1], {karg}
        s_mov_b32 s{b + 2}, {size}
        s_mov_b32 s{b + 3}, 0x20000
        s_waitcnt lgkmcnt(0)
        """)

    def budget(self):
        self(f"""
        s_sub_u32 {S_TMO}, {S_TMO}, 1
        s_cbranch_scc1 L_FAIL
        """)

    def poll(self, vaddr, thr, vt, srd=WS, soff="0", sleep=2):
        top, done = self.lab("poll"), self.lab("polld")
        self.flush()
        self(f"""
        {top}:
        buffer_load_dword {vt}, {vaddr}, {srd}, {soff} offen sc1
        """)
        self.budget()
        self(f"""
        s_waitcnt vmcnt(0)
        v_cmp_gt_i32 vcc, {thr}, {vt}
        s_cbranch_vccz {done}
        s_sleep {sleep}
        s_branch {top}
        {done}:
        """)

    def signal(self, soff, val, wave=None):
        skip = self.lab("nosig")
        if wave is not None: self(f"s_cmp_lg_u32 {S_WAVE}, {wave}\ns_cbranch_scc1 {skip}")
        self(f"s_mov_b32 s63, {val}\ns_atomic_smax s63, s[4:5], {soff} glc\n{skip}:")

    def flag_addr(self, vdst, base, n, sfirst=None, pitch=7):
        self(f"v_min_u32 {vdst}, {n - 1}, {LANE}")
        if sfirst is not None:
            self(f"v_add_u32 {vdst}, {sfirst}, {vdst}")
        self(f"""
        v_lshlrev_b32 {vdst}, {pitch}, {vdst}
        v_add_u32 {vdst}, {base}, {vdst}
        """)

    def lane0_addr(self, vdst, sval):
        self(f"""
        v_mov_b32 {vdst}, {OOB}
        s_mov_b64 exec, 1
        v_mov_b32 {vdst}, {sval}
        s_mov_b64 exec, -1
        """)

    def scalar_init_wait(self):
        top = self.lab("ini")
        self(f"{top}:\ns_load_dwordx16 s[64:79], s[12:13], {DBG_INIT} glc\ns_load_dwordx16 s[80:95], s[12:13], {DBG_INIT + 64} glc")
        self.budget()
        self("s_waitcnt lgkmcnt(0)")
        for k in range(66, 96, 2): self(f"s_and_b64 s[64:65], s[64:65], s[{k}:{k + 1}]")
        self(f"s_and_b32 s64, s64, s65\ns_cbranch_scc0 {top}")

    def pick_sel(self, sdst, t1, t2, show=None):
        self(f"v_lshrrev_b32 {t1}, 8, {t1}\nv_and_b32 {t2}, 3, {LANE}\nv_lshl_or_b32 {t1}, {t1}, 2, {t2}")
        for sh in (8, 4):
            self(f"v_min_u32_dpp {t1}, {t1}, {t1} row_ror:{sh} row_mask:0xf bank_mask:0xf")
        for op in ("v_permlane16_swap_b32", "v_permlane32_swap_b32"):
            self(f"v_mov_b32 {t2}, {t1}\n{op} {t2}, {t1}\nv_min_u32 {t1}, {t1}, {t2}")
        if show: show()
        for sh in (2, 1):
            self(f"v_min_u32_dpp {t1}, {t1}, {t1} row_ror:{sh} row_mask:0xf bank_mask:0xf")
        self(f"v_readfirstlane_b32 {sdst}, {t1}\ns_and_b32 {sdst}, {sdst}, 3\ns_lshl_b32 {sdst}, {sdst}, 13")
        if self.opt.get("sel") is not None:
            self(f"s_mov_b32 {sdst}, {self.opt['sel'] << 13}")

    def page_base(self, sdst, t0, far, asked=False):
        have = self.lab("tab")
        if asked: self(f"v_cmp_gt_i32 vcc, 0, v{t0 + 1}\ns_cbranch_vccz {have}")
        else: self.flag_addr(f"v{t0}", FL_TAB, 64)
        self.poll(f"v{t0}", "0", f"v{t0 + 1}", sleep=1)
        self(f"{have}:")
        self.pick_sel(sdst, f"v{t0 + 1}", f"v{t0 + 2}")
        self(f"s_and_b32 {sdst}, {sdst}, 0x2000\ns_xor_b32 {sdst}, {sdst}, {TOK + (far ^ self.opt.get('far', 0)) * 0x2000}")

    def next_page(self, s):
        return f"s_add_u32 {s}, {s}, {TSEG}\ns_xor_b32 {s}, {s}, 0x2000"

    def tlb_warm(self, v1, v2):
        if not self.opt.get("tlb", 1): return
        skip = self.lab("notlb")
        self(f"""
        s_cmp_lg_u32 {S_WAVE}, 2
        s_cbranch_scc1 {skip}
        v_lshlrev_b32 {v1}, 21, {LANE}
        s_mov_b32 s40, 0x1fff80
        buffer_load_dword {v2}, {v1}, {WS}, s40 offen sc1
        s_add_u32 s40, s40, {64 << 21}
        buffer_load_dword {v2}, {v1}, {WS}, s40 offen sc1
        s_waitcnt vmcnt(0)
        {skip}:
        """)

    def wait_init(self, v1, v2):
        self.flag_addr(v1, DBG_INIT, 32, pitch=2)
        self.poll(v1, "1", v2, srd=DBG)

    def trace_setup(self, v):
        self.vtrace = v
        if not self.opt.get("trace"): return
        self(f"""
        s_lshl_b32 s40, s3, 2
        s_add_u32 s40, s40, {S_WAVE}
        s_lshl_b32 s40, s40, 12
        s_add_u32 s40, s40, {TRACE}
        """)
        self.lane0_addr(v, "s40")

    def stamp(self, k):
        if self.opt.get("trace") and str(k) in str(self.opt.get("only", "0123456789")):
            self(f"s_memtime s[{64 + 2 * k}:{65 + 2 * k}]")

    def trace_flush(self, vt, drain=True, back=0):
        if not self.opt.get("trace"): return
        self("s_memtime s[84:85]\ns_memrealtime s[86:87]\ns_waitcnt lgkmcnt(0)")
        self(f"s_sub_u32 s40, {S_SEG}, {back}\ns_lshl_b32 s40, s40, 6")
        for q in range(3):
            for k in range(4):
                self(f"v_mov_b32 v{vt + k}, s{64 + 2 * (4 * q + k)}")
            self(f"buffer_store_dwordx4 v[{vt}:{vt + 3}], {self.vtrace}, {WS}, s40 offen offset:{16 * q}")
        if drain: self("s_waitcnt vmcnt(0)")

    def dbg_time(self, slot, v1, v2):
        if not self.opt.get("times"): return
        self(f"""
        s_memrealtime s[40:41]
        v_mov_b32 {v1}, s3
        v_lshlrev_b32 {v1}, 7, {v1}
        v_add_u32 {v1}, {TIMES + slot * 4}, {v1}
        s_waitcnt lgkmcnt(0)
        v_mov_b32 {v2}, s40
        s_mov_b64 exec, 1
        buffer_store_dword {v2}, {v1}, {WS}, 0 offen
        s_mov_b64 exec, -1
        """)

    def wave_sum(self, regs, tmps):
        for sh in (8, 4, 2, 1):
            for v in regs:
                self(f"v_add_f32_dpp v{v}, v{v}, v{v} row_ror:{sh} row_mask:0xf bank_mask:0xf")
        for op in ("v_permlane16_swap_b32", "v_permlane32_swap_b32"):
            for v, t in zip(regs, tmps): self(f"v_mov_b32 v{t}, v{v}")
            for v, t in zip(regs, tmps): self(f"{op} v{t}, v{v}")
            for v, t in zip(regs, tmps): self(f"v_add_f32 v{v}, v{v}, v{t}")

    def group_max(self, regs, tmps):
        for op in ("v_permlane16_swap_b32", "v_permlane32_swap_b32"):
            for v, t in zip(regs, tmps): self(f"v_mov_b32 v{t}, v{v}")
            for v, t in zip(regs, tmps): self(f"{op} v{t}, v{v}")
            for v, t in zip(regs, tmps): self(f"v_max_f32 v{v}, v{v}, v{t}")

    def src_lane(self, vdst, vt, rs, g0, r1=2, r0=1):
        self(f"""
        v_bfe_u32 {vdst}, {LANE}, 5, 1
        v_mul_u32_u24 {vdst}, {g0 * rs}, {vdst}
        v_bfe_u32 {vt}, {LANE}, 4, 1
        v_mul_u32_u24 {vt}, {r1 * rs}, {vt}
        v_add_u32 {vdst}, {vdst}, {vt}
        v_bfe_u32 {vt}, {LANE}, 3, 1
        v_mul_u32_u24 {vt}, {r0 * rs}, {vt}
        v_add_u32 {vdst}, {vdst}, {vt}
        v_lshrrev_b32 {vt}, 3, {LANE}
        v_and_b32 {vt}, 6, {vt}
        v_xor_b32 {vt}, {vt}, {LANE}
        """)
        self(f"v_and_b32 {vt}, 7, {vt}\nv_lshl_add_u32 {vdst}, {vt}, 4, {vdst}")

    def tr_lane(self, vdst, vt, sslot):
        self(f"""
        v_bfe_u32 {vt}, {LANE}, 3, 2
        v_xor_b32 {vt}, {sslot}, {vt}
        v_lshlrev_b32 {vt}, 5, {vt}
        v_lshrrev_b32 {vdst}, 2, {LANE}
        v_lshl_add_u32 {vdst}, {vdst}, 7, {vt}
        v_and_b32 {vt}, 3, {LANE}
        v_lshl_add_u32 {vdst}, {vt}, 3, {vdst}
        """)

    def pace_setup(self, shead):
        self(f"s_and_b32 s40, {shead}, 3\ns_cmp_eq_u32 s40, 1\ns_cselect_b64 vcc, -1, 0")

    def pace(self, n):
        if not n: return ""
        l = self.lab("pace")
        return f"s_cbranch_vccnz {l}\ns_waitcnt vmcnt({n})\n{l}:"

    def dense_loader(self, items, vtr0, vtr1, depth=7, pol=" nt", chores={}, pace=0, tail=()):
        self(f"s_lshl_b32 s41, {S_WAVE}, 10")
        chunks = [items[i:i + 4] for i in range(0, len(items), 4)]

        def issue(c):
            for k, (setup, vsrc, off, _) in enumerate(chunks[c]):
                if setup: setup()
                slot = (4 * c + k) % 32
                self(f"""
                s_add_u32 m0, s41, {slot * 4096}
                s_mov_b32 s42, {off}
                {self.pace(pace)}
                buffer_load_dwordx4 {vsrc}, {WW}, s42 offen{pol} lds
                """)
        for c in range(min(depth, len(chunks))): issue(c)
        for c in range(len(chunks)):
            newer = sum(len(chunks[k]) for k in range(c + 1, min(c + depth, len(chunks))))
            if c > len(chunks) - 3: newer += len(tail)
            self(f"s_waitcnt vmcnt({newer}) lgkmcnt(0)\ns_barrier")
            if c + depth < len(chunks): issue(c + depth)
            if c == len(chunks) - 3: self("\n".join(tail))
            for k, (_, _, _, dst) in enumerate(chunks[c]):
                slot = (4 * c + k) % 32
                for p in range(2):
                    self(f"ds_read_b64_tr_b16 {dst(p)}, {vtr0 if slot < 16 else vtr1} offset:{(slot % 16) * 4096 + p * 2048}")
            if c in chores: chores[c]()
        self("s_waitcnt lgkmcnt(0)\ns_barrier")


def wreg(i, n):
    return R("a", i, n) if i < 256 else R("v", i - 128, n)
```

```python
from common import *

S_BUF, S_SRC, S_PREF, S_THR, S_FOFF, S_OUT, S_W4, S_W3 = "s26", "s27", "s28", "s29", "s30", "s31", "s32", "s33"
LOG2E = 1.4426950408889634


def fbits(x):
    import struct
    return hex(struct.unpack("<I", struct.pack("<f", x))[0])


class GStage:
    nks = 32
    gstride = 2 * TPART
    nst = 2
    kind = "row"
    orient = ("W", "W")
    flag_next = f"s_add_u32 {S_THR}, {S_THR}, 1"

    def __init__(self, g):
        self.g = g
        self.v = Regs("v", 1, 128)

    def wr(self, t, ks, n=4, p=0):
        return wreg((t * self.nks + ks) * 4 + 2 * p, n)

    def load_rounds(self, rounds, rs, a_of, P, G1, G0):
        g = self.g
        v = Regs("v", self.xr, self.xr + 32)
        vl, vt, tr0, tr1 = (f"v{v.get()}" for _ in range(4))
        g.src_lane(vl, vt, rs, G0)
        g(f"""
        s_lshr_b32 s40, {S_WAVE}, 1
        s_mul_i32 s40, s40, {P * rs}
        s_and_b32 s41, {S_WAVE}, 1
        s_mul_i32 s41, s41, {G1 * rs}
        s_add_u32 s40, s40, s41
        v_add_u32 {vl}, s40, {vl}
        """)
        g.tr_lane(tr0, vt, S_WAVE)
        g(f"v_add_u32 {tr1}, 0x10000, {tr0}")
        items = []
        for t, (setup, scol) in enumerate(rounds):
            vs = f"v{v.get()}"
            g(f"v_add_u32 {vs}, {scol}, {vl}")
            for ks in range(self.nks):
                items.append((setup if ks == 0 else None, vs, a_of(ks) * rs,
                              (lambda p, t=t, ks=ks: self.wr(t, ks, 2, p))))
        if g.opt.get("ilv", 1) and rounds[1][0] is None:
            n = self.nks
            items = [items[t * n + ks] for ks in range(n) for t in range(2)] + items[2 * n:]
        g.dense_loader(items, tr0, tr1, pol="" if self.name == "QKV" and g.opt.get("polg", 0) == 0 else " nt", chores=self.chores(), tail=self.tail(), pace=g.opt.get("pg", 6) if self.name == "QKV" else 0,
                       depth=7 if self.name == "QKV" else g.opt.get("depth", 7))

    def chores(self):
        return {}

    def tail(self):
        return []

    def run_addr(self, sdst, srun):
        self.g(f"""
        s_lshr_b32 s40, {srun}, 1
        s_lshl_b32 s40, s40, 14
        s_and_b32 s41, {srun}, 1
        s_lshl_b32 s41, s41, 12
        s_add_u32 {sdst}, s40, s41
        """)

    def dma_list(self):
        out = []
        if self.kind == "row":
            for u in range(self.nks // 2):
                out.append([f"s_add_u32 m0, s34, {u * 4096 - u * 128}",
                            f"buffer_load_dwordx4 {self.vdma}, {WS}, s35 offen offset:{u * 128} sc1 lds"])
        else:
            for grp in range((self.nks + 7) // 8):
                short = 8 * grp + 8 > self.nks
                pre = [f"s_add_u32 s36, {S_W3 if short else S_W4}, {grp * 16384}", "s_add_u32 m0, s34, s36",
                       f"s_add_u32 s36, s35, {grp * self.gstride}"] + (["s_add_u32 s36, s36, s39"] if short else [])
                for k in range(4):
                    out.append((pre if k == 0 else []) + [f"buffer_load_dwordx4 {self.vdma}, {WS}, s36 offen offset:{k * 1024} sc1 lds"])
        return out

    def xread(self, ks, rt):
        dst = R("v", self.xr + (ks % 4) * 8 + rt * 4, 4)
        if self.kind == "row":
            return f"ds_read_b128 {dst}, {self.vrd[ks & 1]} offset:{(ks >> 1) * 4096 + rt * 2048}"
        off = (2 * ks + rt) * 1024
        return f"ds_read_b128 {dst}, {self.vrd[off >> 16]} offset:{off & 0xffff}"

    def mfma(self, ks, t, rt):
        acc = R("v", self.acc + (t * 2 + rt) * 4, 4)
        x = R("v", self.xr + (ks % 4) * 8 + rt * 4, 4)
        a, b = (self.wr(t, ks), x) if self.orient[t] == "W" else (x, self.wr(t, ks))
        if self.g.opt.get("nomfma") and ks: return "s_nop 3"
        return f"v_mfma_f32_16x16x32_bf16 {acc}, {a}, {b}, {'0' if ks == 0 else acc}"

    def ksteps(self, lo, hi, extra, fills):
        g, nt = self.g, len(self.orient)
        extra = list(extra)
        per = -(-len(extra) // max(1, hi - lo - 1))
        for ks in range(lo, hi):
            if ks in (0, 5, 13, 21, 28): g.stamp(5 + (0, 5, 13, 21, 28).index(ks))
            g(f"s_waitcnt lgkmcnt({2 * min(2, self.nks - 1 - ks)})")
            fill = [[self.xread(ks + 3, rt)] for rt in range(2)] if ks + 3 < self.nks else []
            for _ in range(per):
                if extra: fill.append(extra.pop(0))
            fill += fills.get(ks, [])
            for t in range(nt):
                for rt in range(2):
                    g(self.mfma(ks, t, rt))
                    if fill: g("\n".join(fill.pop(0)))
            for f in fill: g("\n".join(f))
        assert not extra

    def prologue(self):
        g, v, nm = self.g, self.v, self.name
        nt = len(self.orient)
        self.xr = v.get(32, 4)
        self.acc = v.get(8 * nt, 4)
        self.tmp = v.get(16, 4)
        self.vdma, self.vfl, self.vft, self.vout, vl0, vl1, vd, vtrc = (f"v{v.get()}" for _ in range(8))
        self.vrd = [f"v{v.get()}", f"v{v.get()}"]
        t0, t1 = f"v{self.tmp}", f"v{self.tmp + 1}"
        g(f"L_{nm}:")
        if self.kind == "row":
            g(f"""
            v_lshrrev_b32 {t0}, 3, {LANE}
            v_and_b32 {t1}, 6, {t0}
            v_xor_b32 {t1}, {t1}, {LANE}
            v_and_b32 {t1}, 7, {t1}
            v_lshlrev_b32 {t1}, 4, {t1}
            v_lshl_add_u32 {self.vdma}, {t0}, 11, {t1}
            s_lshl_b32 s40, {S_WAVE}, 14
            v_add_u32 {self.vdma}, s40, {self.vdma}
            s_lshl_b32 {S_W4}, {S_WAVE}, 10
            v_and_b32 {t0}, 6, {LANE}
            v_lshrrev_b32 {t1}, 4, {LANE}
            v_xor_b32 {t0}, {t0}, {t1}
            v_lshlrev_b32 {t0}, 4, {t0}
            v_and_b32 {t1}, 15, {LANE}
            v_lshl_add_u32 {vl0}, {t1}, 7, {t0}
            v_xor_b32 {vl1}, 64, {vl0}
            """)
        else:
            g(f"""
            v_lshlrev_b32 {self.vdma}, 4, {LANE}
            s_lshl_b32 {S_W4}, {S_WAVE}, 12
            s_min_u32 {S_W3}, {S_W4}, 0x2000
            v_mov_b32 {vl0}, {self.vdma}
            v_add_u32 {vl1}, 0x10000, {vl0}
            """)
            if nm == "F1": self.quad_major(self.vdma)
        self.weights()
        g.dbg_time(self.dbg_slot, t0, t1)
        self.setup()
        g.trace_setup(vtrc)
        return vl0, vl1, vd

    def emit(self):
        g, nm = self.g, self.name
        BUF = self.nks * 2048
        DONE = 2 * BUF
        vl0, vl1, vd = self.prologue()
        g(f"""
        v_lshlrev_b32 {vd}, 2, {LANE}
        v_add_u32 {vd}, {DONE}, {vd}
        s_mov_b32 {S_SEG}, 0
        s_mov_b32 {S_BUF}, 0
        s_mov_b32 {S_THR}, 1
        s_mov_b32 {S_FOFF}, 0
        s_mov_b32 {S_PREF}, 0
        s_lshl_b32 s44, {S_WAVE}, 8
        s_add_u32 s44, s44, {DONE}
        s_cmp_eq_u32 {S_WAVE}, 0
        s_cselect_b32 s45, 0, {OOB}
        s_cselect_b32 s46, 1, -1
        """)
        if g.opt.get("hold") == nm: g.poll(self.vfl, "64", self.vft, sleep=8)
        g(f"""
        ;@hot
        L_{nm}_top:
        s_cmp_eq_u32 {S_PREF}, 1
        s_cbranch_scc1 L_{nm}_go
        s_cmp_eq_u32 {S_PREF}, 2
        s_cbranch_scc1 L_{nm}_mid
        s_cmp_lg_u32 {S_WAVE}, 0
        s_cbranch_scc1 L_{nm}_park
        buffer_load_dword {self.vft}, {self.vfl}, {WS}, {S_FOFF} offen sc1
        s_waitcnt vmcnt(1)
        s_barrier
        """)
        g.signal("s62", S_SEG)
        g(f"s_cmp_ge_u32 {S_SEG}, {NSEG}\ns_cbranch_scc1 L_END")
        g.stamp(0)
        g(f"""
        s_waitcnt vmcnt(0)
        v_cmp_gt_i32 vcc, {S_THR}, {self.vft}
        s_cbranch_vccz L_{nm}_issue
        """)
        g.poll(self.vfl, S_THR, self.vft, soff=S_FOFF, sleep=g.opt.get("gsleep", 1))
        g(f"""
        s_branch L_{nm}_issue
        L_{nm}_park:
        s_waitcnt vmcnt(0)
        s_barrier
        s_cmp_ge_u32 {S_SEG}, {NSEG}
        s_cbranch_scc1 L_END
        """)
        g.stamp(0)
        g(f"L_{nm}_issue:\ns_barrier\nL_{nm}_mid:")
        g.stamp(4)
        own = f"s_add_u32 s34, {S_BUF}, {S_W4}" if self.kind == "row" else f"s_mov_b32 s34, {S_BUF}"
        g(f"{own}\ns_mov_b32 s35, {S_SRC}")
        dmas = self.dma_list()
        N = g.opt.get("n0", 12)
        dmas, rest = dmas[:N], dmas[N:]
        for d in dmas: g("\n".join(d) + ("\ns_nop 0" if g.opt.get("rr", 1) else ""))
        g(f"s_cmp_eq_u32 {S_PREF}, 0\ns_cbranch_scc1 L_{nm}_go\ns_mov_b32 {S_PREF}, 0\ns_waitcnt vmcnt({N})\ns_barrier")
        g.signal("s62", S_SEG, 0)
        g(f"L_{nm}_go:")
        g.stamp(1)
        g(f"""
        v_add_u32 {self.vrd[0]}, {S_BUF}, {vl0}
        v_add_u32 {self.vrd[1]}, {S_BUF}, {vl1}
        s_sub_u32 {S_BUF}, {BUF}, {S_BUF}
        {g.next_page(S_SRC)}
        """)
        g(self.flag_next)
        g(f"s_waitcnt vmcnt({N - 4})\ns_barrier")
        for ks in range(3):
            for rt in range(2): g(self.xread(ks, rt))
        ask = lambda k: [[f"s_add_u32 m0, s44, {1024 * k}", f"s_add_u32 s40, {S_FOFF}, s45"],
                         [f"buffer_load_dword {self.vfl}, {WS}, s40 offen sc1 lds"]]
        early = {k: [d] for k, d in enumerate(rest)}
        self.ksteps(0, 5, [], early)
        g(f"s_waitcnt vmcnt({N - 8 + min(5, len(rest))})\ns_barrier")
        early[11] = [[own, f"s_mov_b32 s35, {S_SRC}"]]
        early[12] = ask(0)
        self.ksteps(5, 13, [], early)
        blk3 = N + len(rest) - 12
        late = g.opt.get("b3", 19)

        def report():
            g(f"s_cmp_eq_u32 s46, {S_PREF}\ns_cbranch_scc1 L_{nm}_rep\nL_{nm}_s2:")
        if late > 13:
            if g.opt.get("psig", 1):
                g(f"s_waitcnt vmcnt({blk3 + 1})\ns_barrier")
                report()
            else:
                g(f"""
                s_waitcnt vmcnt({blk3 + 1 + self.nst})
                s_cmp_lg_u32 {S_PREF}, 0
                s_cbranch_scc1 L_{nm}_b2
                s_waitcnt vmcnt({blk3 + 1})
                L_{nm}_b2:
                s_barrier
                """)
            self.ksteps(13, late, [], {})
        g(f"""
        s_waitcnt vmcnt(0)
        s_barrier
        ds_read_b32 {self.vft}, {vd}
        """)
        if not g.opt.get("psig", 1): report()
        self.ksteps(late, late + 2, [], {})
        late += 2
        g(f"""
        s_waitcnt lgkmcnt(4)
        v_cmp_gt_i32 vcc, {S_THR}, {self.vft}
        s_mov_b32 {S_PREF}, 0
        s_cbranch_vccnz L_{nm}_nopf
        s_cmp_ge_u32 {S_SEG}, {0 if nm in str(g.opt.get("nopref")) else NSEG - 1}
        s_cbranch_scc1 L_{nm}_nopf
        s_mov_b32 {S_PREF}, 1
        """)
        hist = list(g.hist)
        self.ksteps(late, self.nks, dmas, {})
        g.flush()
        g(f"s_branch L_{nm}_epi\nL_{nm}_nopf:")
        g.hist = hist
        if g.opt.get("mid", 1):
            k1, k2 = max(late + 1, self.nks - g.opt.get("mq", 8)), self.nks - 2
            self.ksteps(late, k2, [], {k1: ask(1)})
            g(f"s_waitcnt vmcnt(0)\ns_barrier\nds_read_b32 {self.vft}, {vd} offset:1024")
            self.ksteps(k2, self.nks, [], {})
            g(f"""
            v_cmp_gt_i32 vcc, {S_THR}, {self.vft}
            s_cmp_eq_u64 vcc, 0
            s_cselect_b32 {S_PREF}, 2, 0
            s_cmp_lt_u32 {S_SEG}, {NSEG - 1}
            s_cselect_b32 {S_PREF}, {S_PREF}, 0
            """)
        else:
            self.ksteps(late, self.nks, [], {})
        g(f"L_{nm}_epi:")
        g.stamp(2)
        self.epilogue()
        g.stamp(3)
        g.trace_flush(self.tmp + 12, drain=False)
        g(f"""
        s_add_u32 {S_SEG}, {S_SEG}, 1
        {g.next_page(S_OUT)}
        """)
        g.flush()
        g(f"s_branch L_{nm}_top\n;@end\nL_{nm}_rep:")
        g.signal("s62", S_SEG)
        g(f"s_branch L_{nm}_s2")

    def quad_major(self, vdst):
        t0 = f"v{self.tmp}"
        self.g(f"""
        v_and_b32 {vdst}, 3, {LANE}
        v_lshlrev_b32 {vdst}, 4, {vdst}
        v_lshrrev_b32 {t0}, 4, {LANE}
        v_lshl_add_u32 {vdst}, {t0}, 6, {vdst}
        v_bfe_u32 {t0}, {LANE}, 2, 2
        v_lshl_add_u32 {vdst}, {t0}, 8, {vdst}
        """)

    def sig_addr(self, base):
        self.g(f"s_lshl_b32 s62, {S_IDX}, 7\ns_add_u32 s62, s62, {base}")

    def a(self, t, rt, r=0):
        return self.acc + (t * 2 + rt) * 4 + r


A_H = lambda ks: 512 * (ks >> 4) + 16 * (ks & 15)
A_O = lambda ks: 128 * (ks >> 2) + 16 * (ks & 3)


class QKV(GStage):
    name, orient, dbg_slot, nst = "QKV", ("W", "W", "X"), 3, 3
    flag_next = f"s_add_u32 {S_FOFF}, {S_FOFF}, 128"
    src_step = 65536

    def chores(self):
        def init():
            self.g(f"s_cmp_lg_u32 {S_WAVE}, 0\ns_cbranch_scc1 L_QKV_noinit")
            self.g.scalar_init_wait()
            self.g("L_QKV_noinit:")
        return {10: init}

    def tail(self):
        g, t = self.g, self.tmp + 4
        g(f"""
        v_lshrrev_b32 {self.vfl}, 3, {LANE}
        v_lshlrev_b32 {self.vfl}, 7, {self.vfl}
        v_and_b32 {self.vft}, 7, {LANE}
        v_lshl_add_u32 {self.vfl}, {self.vft}, 2, {self.vfl}
        v_add_u32 {self.vfl}, {FL_LN1}, {self.vfl}
        """)
        g.flag_addr(f"v{t}", FL_TAB, 64)
        return [f"buffer_load_dword {self.vft}, {self.vfl}, {WS}, 0 offen sc1", f"buffer_load_dword v{t + 1}, v{t}, {WS}, 0 offen sc1"]

    def weights(self):
        g = self.g
        g(f"""
        s_and_b32 s43, {S_IDX}, 1
        s_lshr_b32 s44, {S_IDX}, 1
        s_lshl_b32 s44, s44, 8
        s_add_u32 s45, s44, 128
        s_lshl_b32 s46, s43, 7
        s_add_u32 s46, s46, s44
        s_xor_b32 s46, s46, {256 * g.opt.get('vx', 1)}
        s_load_dwordx4 s[48:51], s[0:1], {K_WQ}
        s_waitcnt lgkmcnt(0)
        s_cmp_eq_u32 s43, 0
        s_cselect_b32 s8, s48, s50
        s_cselect_b32 s9, s49, s51
        s_mov_b32 s10, {8 << 20}
        s_mov_b32 s11, 0x20000
        """)
        g("s_lshr_b32 s40, s44, 8")
        g.pace_setup("s40")
        self.load_rounds([(None, "s44"), (None, "s45"), (lambda: g.srd(WW, K_WV, 8 << 20), "s46")], 8192, A_H, 256, 8, 4)

    def setup(self):
        g = self.g
        g(f"""
        s_lshr_b32 s62, {S_IDX}, 2
        s_lshl_b32 s62, s62, 7
        s_and_b32 s40, {S_IDX}, 3
        s_lshl_b32 s40, s40, 2
        s_add_u32 s62, s62, s40
        s_add_u32 s62, s62, {FL_QKV}
        """)
        self.vout2 = f"v{self.v.get()}"
        g(f"""
        s_mov_b32 {S_SRC}, {H1}
        s_lshr_b32 s40, {S_IDX}, 1
        s_mul_i32 s40, s40, {THEAD}
        s_mov_b32 {S_OUT}, 0
        s_and_b32 s41, {S_IDX}, 1
        s_lshl_b32 s42, {S_WAVE}, 11
        s_add_u32 s42, s42, s40
        s_lshl_b32 s40, s41, 14
        s_add_u32 s40, s40, s42
        v_lshl_add_u32 {self.vout}, {LANE}, 4, s40
        s_lshl_b32 s40, s41, 10
        s_add_u32 s40, s40, s42
        s_add_u32 s40, s40, {2 * TPART}
        s_xor_b32 s40, s40, {THEAD * g.opt.get('vx', 1)}
        v_lshl_add_u32 {self.vout2}, {LANE}, 4, s40
        """)

    def emit(self):
        g, t = self.g, None
        vl0, vl1, _ = self.prologue()
        t = self.tmp
        order = [(0, 0), (1, 0), (0, 1), (1, 1), (2, 0), (2, 1)]
        dst = lambda tt, rt: t + 4 * rt + 2 * tt if tt < 2 else t + 8 + 2 * rt
        cvt = lambda tt, rt: [f"v_cvt_pk_bf16_f32 v{dst(tt, rt) + h}, v{self.a(tt, rt, 2 * h)}, v{self.a(tt, rt, 2 * h + 1)}" for h in range(2)]
        stores = [f"buffer_store_dwordx4 {R('v', t + 4 * rt, 4)}, {self.vout}, {WS}, s37 offen offset:{rt * 1024} sc1" for rt in range(2)]
        stores.append(f"buffer_store_dwordx4 {R('v', t + 8, 4)}, {self.vout2}, {WS}, s37 offen sc1")
        dmas = self.dma_list()

        g(f"""
        s_mov_b32 {S_SEG}, 0
        s_mov_b32 s37, {OOB}
        s_mov_b32 {S_FOFF}, 0
        s_mov_b32 s34, {S_W4}
        s_mov_b32 s35, {S_SRC}
        v_mov_b32 {self.vrd[0]}, {vl0}
        v_mov_b32 {self.vrd[1]}, {vl1}
        """)
        g(f"s_waitcnt vmcnt(0)\nv_cmp_gt_i32 vcc, 1, {self.vft}\ns_cbranch_vccz L_QKV_rows")
        g.poll(self.vfl, "1", self.vft, sleep=1)
        g("L_QKV_rows:")
        g.page_base("s40", t + 4, 0, asked=True)
        g(f"s_add_u32 {S_OUT}, {S_OUT}, s40")
        for d in dmas: g("\n".join(d))
        g("s_waitcnt vmcnt(13)\ns_barrier")
        g.dbg_time(18, f"v{t}", f"v{t + 1}")
        for ks in range(3):
            for rt in range(2): g(self.xread(ks, rt))
        g(";@pad L_QKV_top\n;@hot\nL_QKV_top:")
        g.stamp(1)
        first, sig, last = 3, g.opt.get("qsig", 12), 29
        assert sig <= 12
        for ks in range(32):
            fill = [[self.xread((ks + 3) % 32, rt)] for rt in range(2)]
            if ks == first:
                g(f"""
                s_xor_b32 s34, s34, 0x10000
                s_add_u32 s35, s35, 65536
                s_cbranch_vccz L_QKV_have
                """)
                g.poll(self.vfl, "1", self.vft, soff=S_FOFF, sleep=1)
                g("L_QKV_have:\ns_waitcnt vmcnt(11)\ns_barrier")
            if ks == sig:
                g(f"s_waitcnt vmcnt({sig - first})\ns_barrier")
                g.signal("s62", S_SEG, 0)
            if ks == last:
                g(f"""
                s_waitcnt vmcnt(0)
                s_barrier
                v_xor_b32 {self.vrd[0]}, 0x10000, {self.vrd[0]}
                v_xor_b32 {self.vrd[1]}, 0x10000, {self.vrd[1]}
                """)
            if first <= ks < first + 16: fill.append(dmas[ks - first])
            if ks in (1, 2): fill += [[x] for x in stores[2 * ks - 2:2 * ks]]
            if ks == 2: fill.append([f"v_cmp_gt_i32 vcc, 1, {self.vft}"])
            if ks == 20:
                fill.append([f"s_add_u32 {S_FOFF}, {S_SEG}, 2", f"s_and_b32 {S_FOFF}, {S_FOFF}, 56", f"s_lshl_b32 {S_FOFF}, {S_FOFF}, 7",
                             f"buffer_load_dword {self.vft}, {self.vfl}, {WS}, {S_FOFF} offen sc1"])
            g("s_waitcnt lgkmcnt(4)")
            for i, (tt, rt) in enumerate(order):
                if ks == 0: g("\n".join(cvt(tt, rt)))
                g(self.mfma(ks, tt, rt))
                if fill and (ks or i >= 4): g("\n".join(fill.pop(0)))
            assert not fill
        g.stamp(2); g.stamp(3)
        g.trace_flush(t + 12, drain=False)
        g(f"""
        s_mov_b32 s37, {S_OUT}
        s_add_u32 {S_OUT}, {S_OUT}, {TSEG}
        s_xor_b32 {S_OUT}, {S_OUT}, 0x2000
        s_add_u32 {S_SEG}, {S_SEG}, 1
        s_cmp_lt_u32 {S_SEG}, {NSEG}
        s_cbranch_scc1 L_QKV_top
        ;@end
        """)
        for tt, rt in order: g("\n".join(cvt(tt, rt)))
        g("\n".join(stores) + "\ns_waitcnt vmcnt(0) lgkmcnt(0)\ns_barrier")
        g.signal("s62", S_SEG, 0)
        g("s_branch L_END")


class PartialOut(GStage):
    kind = "frag"

    def out_setup(self, base):
        self.g(f"""
        s_lshl_b32 s40, {S_IDX}, 14
        s_add_u32 s40, s40, s38
        s_add_u32 {S_OUT}, s40, {base}
        s_lshl_b32 s40, {S_WAVE}, 11
        """)
        self.quad_major(self.vout)
        self.g(f"v_add_u32 {self.vout}, s40, {self.vout}")

    def epilogue(self):
        g, t = self.g, self.tmp
        for rt in range(2):
            for tt in range(2):
                for h in range(2):
                    g(f"v_cvt_pk_bf16_f32 v{t + 4 * rt + 2 * tt + h}, v{self.a(tt, rt, 2 * h)}, v{self.a(tt, rt, 2 * h + 1)}")
            g(f"buffer_store_dwordx4 {R('v', t + 4 * rt, 4)}, {self.vout}, {WS}, {S_OUT} offen offset:{rt * 1024} sc1")

    def col_rounds(self, krows):
        self.g(f"""
        s_lshr_b32 s44, {S_IDX}, 3
        s_mul_i32 s44, s44, {krows * 2048}
        s_and_b32 s45, {S_IDX}, 7
        s_lshl_b32 s45, s45, 8
        s_add_u32 s44, s44, s45
        s_add_u32 s45, s44, 128
        """)
        return [(None, "s44"), (None, "s45")]


class WO(PartialOut):
    name, dbg_slot = "WO", 4
    gstride = 2 * THEAD

    def weights(self):
        self.g.srd(WW, K_WO, 8 << 20)
        self.load_rounds(self.col_rounds(1024), 2048, A_O, 64, 8, 4)

    def setup(self):
        g = self.g
        g(f"s_and_b32 s43, {S_IDX}, 24")
        g.flag_addr(self.vfl, FL_QK, 8, "s43")
        self.sig_addr(FL_WO)
        g.page_base("s38", self.tmp, 1)
        g(f"""
        s_xor_b32 {S_SRC}, s38, 0x2000
        s_lshr_b32 s40, {S_WAVE}, 1
        s_add_u32 s40, s40, s43
        s_mul_i32 s40, s40, {THEAD}
        s_and_b32 s41, {S_WAVE}, 1
        s_lshl_b32 s41, s41, 12
        s_add_u32 s40, s40, s41
        s_add_u32 s40, s40, {3 * TPART}
        s_add_u32 {S_SRC}, {S_SRC}, s40
        """)
        self.out_setup(PWO)


class F2(PartialOut):
    name, nks, dbg_slot = "F2", 38, 6

    def weights(self):
        g = self.g
        g.srd(WW, K_W2, 3584 * 2048)
        rounds = self.col_rounds(38 * 32)
        g(f"s_cmp_ge_u32 {S_IDX}, 16\ns_cselect_b32 s40, {64 * 2048}, 0\ns_sub_u32 s44, s44, s40\ns_sub_u32 s45, s45, s40")
        self.load_rounds(rounds, 2048, lambda ks: 32 * ks, 8, 16, 4)
        g(f"s_cmp_lt_u32 {S_IDX}, 16\ns_cbranch_scc1 L_F2_keep")
        for t in range(2):
            for k in range(8):
                g(f"v_accvgpr_write_b32 a{t * 38 * 4 + k}, 0")
        g.flush()
        g("L_F2_keep:")

    def setup(self):
        g = self.g
        g.page_base("s38", self.tmp, 1)
        g(f"s_lshr_b32 s43, {S_IDX}, 3\ns_mul_i32 s43, s43, 19\ns_min_u32 s43, s43, 37")
        g.flag_addr(self.vfl, FL_F1, 19, "s43")
        g(f"s_add_u32 s44, s43, {S_WAVE}\ns_min_u32 s45, {S_WAVE}, 2\ns_add_u32 s45, s45, s43")
        self.run_addr(S_SRC, "s44")
        self.run_addr("s39", "s45")
        g(f"s_sub_u32 s39, s39, {S_SRC}\ns_add_u32 {S_SRC}, {S_SRC}, s38\ns_add_u32 {S_SRC}, {S_SRC}, {ACT}")
        self.sig_addr(FL_F2)
        self.out_setup(PF2)


class F1(GStage):
    name, dbg_slot, kind, nst = "F1", 5, "frag", 1

    def weights(self):
        g = self.g
        g.srd(WW, K_W1, 1024 * 7168)
        g(f"s_lshl_b32 s44, {S_IDX}, 7")
        self.load_rounds([(None, "s44"), (lambda: g.srd(WW, K_W3, 1024 * 7168), "s44")], 7168, A_O, 64, 8, 4)

    def setup(self):
        g, t0 = self.g, f"v{self.tmp}"
        g.flag_addr(self.vfl, FL_LN2, 8)
        self.sig_addr(FL_F1)
        g.page_base("s38", self.tmp, 1)
        self.run_addr(S_SRC, S_WAVE)
        self.run_addr(S_OUT, S_IDX)
        g(f"""
        s_add_u32 {S_SRC}, {S_SRC}, s38
        s_add_u32 {S_SRC}, {S_SRC}, {H2}
        s_add_u32 {S_OUT}, {S_OUT}, s38
        s_add_u32 {S_OUT}, {S_OUT}, {ACT}
        s_lshr_b32 s40, {S_WAVE}, 1
        s_lshl_b32 s40, s40, 11
        s_and_b32 s41, {S_WAVE}, 1
        s_lshl_b32 s41, s41, 9
        s_add_u32 s40, s40, s41
        v_and_b32 {t0}, 31, {LANE}
        v_lshl_add_u32 {self.vout}, {t0}, 4, s40
        v_lshrrev_b32 {t0}, 5, {LANE}
        v_lshl_add_u32 {self.vout}, {t0}, 10, {self.vout}
        s_mov_b32 s37, {fbits(-LOG2E)}
        """)

    def epilogue(self):
        g, t = self.g, self.tmp
        idx = [(rt, r) for rt in range(2) for r in range(4)]
        for i, (rt, r) in enumerate(idx): g(f"v_mul_f32 v{t + i}, s37, v{self.a(0, rt, r)}")
        for i in range(8): g(f"v_exp_f32 v{t + i}, v{t + i}")
        for rt in range(2):
            for h in range(2):
                a, b = self.a(0, rt, 2 * h), self.a(1, rt, 2 * h)
                g(f"v_pk_mul_f32 {R('v', a, 2)}, {R('v', a, 2)}, {R('v', b, 2)}")
        for i in range(8): g(f"v_add_f32 v{t + i}, 1.0, v{t + i}")
        for i in range(8): g(f"v_rcp_f32 v{t + i}, v{t + i}")
        for rt in range(2):
            for h in range(2):
                a = self.a(0, rt, 2 * h)
                g(f"v_pk_mul_f32 {R('v', a, 2)}, {R('v', a, 2)}, {R('v', t + 4 * rt + 2 * h, 2)}")
        for rt in range(2):
            for h in range(2):
                g(f"v_cvt_pk_bf16_f32 v{t + 8 + 2 * rt + h}, v{self.a(0, rt, 2 * h)}, v{self.a(0, rt, 2 * h + 1)}")
        g(f"""
        v_permlane32_swap_b32 v{t + 8}, v{t + 10}
        v_permlane32_swap_b32 v{t + 9}, v{t + 11}
        buffer_store_dwordx4 {R('v', t + 8, 4)}, {self.vout}, {WS}, {S_OUT} offen sc1
        """)
```

```python
from common import *
from gstage import fbits
from light import SM_SCALE, P2, P4

S_SEL, S_MEM, S_O, S_VM, S_LX, S_MEML = "s26", "s27", "s28", "s29", "s36", "s37"
S_FORCE = "s51"
S_DP, S_DM = "s52", "s53"
STAGE = 0x20000
POS = [((p >> 1) & 3, (p & 1) + 2 * (p >> 3)) for p in range(16)]
bits = lambda m: [j for j in range(16) if int(m[1:], 16) >> j & 1]
POS_OF = {ab: p for p, ab in enumerate(POS)}


class Rec:
    def __init__(self, g):
        self.g = g
        v = self.v = Regs("v", 1, 128)
        self.A = v.get(16, 4)
        self.S = v.get(32, 4)
        self.acc = v.get(16, 4)
        self.RM = v.get(8, 4)
        self.pt = v.get(4, 4)
        self.ones = v.get(4, 4)
        self.vst = [f"v{v.get()}" for _ in range(4)]
        (self.vsr, self.vml, self.vmr, self.vidx, self.vchk, self.vtrig, self.vsnd, self.vvm, self.vtrc,
         self.vstep) = (f"v{v.get()}" for _ in range(10))

    def both(self, op, data, vaddr, soff, stmp="s40"):
        return [f"{op} {data}, {vaddr}, {WS}, {soff} offen sc1",
                f"s_xor_b32 {stmp}, {soff}, {LOCX}\n{op} {data}, {vaddr}, {WS}, {stmp} offen"]

    def same_side(self, op, data, vaddr, soff):
        a, b = self.g.lab("wt"), self.g.lab("wtd")
        return f"""
        s_cmp_eq_u32 {S_LX}, 0
        s_cbranch_scc1 {a}
        {op} {data}, {vaddr}, {WS}, {soff} offen
        s_branch {b}
        {a}:
        {op} {data}, {vaddr}, {WS}, {soff} offen sc1
        {b}:
        """

    def sparse_loader(self, rounds):
        g = self.g
        g(f"s_lshl_b32 s41, {S_WAVE}, 15")
        g.pace_setup(S_IDX)
        chunks = [(r, b) for r in rounds for b in range(4)]

        def issue(c):
            r, b = chunks[c]
            if b == 0 and r.get("setup"): r["setup"]()
            for p in range(4):
                for hi in range(2):
                    g(f"""
                    s_add_u32 m0, s41, {b * 8192 + p * 2048 + hi * 1024}
                    s_add_u32 s42, {r['sadd'](b)}, {r['off'](b, p, hi)}
                    {g.pace(g.opt.get(("pr", "pv2")[self.role], 0))}
                    buffer_load_dwordx4 {r['vsrc']}, {WW}, s42 offen{'' if g.opt.get('polq', 0) == 0 else ' nt'} lds
                    """)
        for c in range(3): issue(c)
        n = len(chunks)
        for c in range(n):
            g(f"s_waitcnt vmcnt({8 * min(2, n - 1 - c)}) lgkmcnt(0)\ns_barrier")
            if g.opt.get("ltimes") and c % 4 == 3:
                g(f"s_memrealtime s[{30 + 2 * (c // 4)}:{31 + 2 * (c // 4)}]")
            if c + 3 < n: issue(c + 3)
            for ins in chunks[c][0]["reads"](chunks[c][1]): g(ins)
            self.scalar_chores(c)
            if c >= n - 4:
                g("s_waitcnt lgkmcnt(0)\ns_barrier")
                for k in range(8):
                    g(f"ds_write_b128 {self.vsr}, {P4(self.S + 4 * k)} offset:{chunks[c][1] * 8192 + k * 1024}")
        g("s_waitcnt lgkmcnt(0)")
        if g.opt.get("ltimes"):
            for k in range(4): g(f"v_mov_b32 v{self.S + k}, s{30 + 2 * k}")
            g(f"v_mov_b32 v{self.pt}, {96 + 16 * self.role}\nbuffer_store_dwordx4 {P4(self.S)}, v{self.pt}, {DBG}, 0 offen\ns_waitcnt vmcnt(0)")

    def mem_round(self, vl, scol, dst, setup=None):
        vs = f"v{self.lv.get()}"
        self.g(f"v_add_u32 {vs}, {scol}, {vl}")
        off = lambda b, p, hi: (256 * b + 32 * (p >> 1) + (p & 1) + 8 * hi) * 8192
        if dst is None: d = lambda a, b, p: P2(self.S + 8 * a + 2 * p)
        else: d = lambda a, b, p: dst(POS_OF[a, b], p)
        reads = lambda b: [f"ds_read_b64_tr_b16 {d(a, b, p)}, {self.vtr[a]} offset:{b * 8192 + p * 2048}"
                           for a in range(4) for p in range(4)]
        return dict(setup=setup, vsrc=vs, off=off, reads=reads, sadd=lambda b: S_DP if b < 2 else S_DM)

    def addr_setup(self):
        g = self.g
        self.lv = Regs("v", self.A, self.A + 16)
        self.vtr = [f"v{self.lv.get()}" for _ in range(4)]
        vt = f"v{self.pt}"
        g.tr_lane(self.vtr[0], vt, S_WAVE)
        g(f"""
        s_lshl_b32 s40, {S_WAVE}, 15
        v_add_u32 {self.vtr[0]}, s40, {self.vtr[0]}
        v_lshl_add_u32 {self.vsr}, {LANE}, 4, s40
        s_lshl_b32 s40, {S_WAVE}, 12
        s_add_u32 s40, s40, {STAGE}
        v_lshl_add_u32 {self.vst[0]}, {LANE}, 4, s40
        s_lshr_b32 s54, {S_IDX}, 4
        s_lshl_b32 {S_DP}, s54, 22
        s_sub_u32 {S_DM}, 0, {S_DP}
        """)
        for a in range(1, 4):
            g(f"v_xor_b32 {self.vtr[a]}, {a << 15}, {self.vtr[0]}\nv_xor_b32 {self.vst[a]}, {a << 12}, {self.vst[0]}")
        vl = f"v{self.lv.get()}"
        g.src_lane(vl, vt, 8192, 2, r1=4, r0=16)
        g(f"s_lshl_b32 s40, {S_WAVE}, 19\nv_add_u32 {vl}, s40, {vl}")
        return vl

    def scalar_chores(self, c):
        g = self.g
        first, last = ((g.opt.get("p0", 6), g.opt.get("p1", 6)), (3, 3))[self.role]
        if not first <= c <= last: return
        skip = g.lab("chore")
        g(f"s_cmp_lg_u32 {S_WAVE}, 0\ns_cbranch_scc1 {skip}")
        if c == first:
            g.scalar_init_wait()
            g(f"""
            s_mov_b32 s46, 0xffff
            s_and_b32 s40, {S_IDX}, 3
            s_lshl_b32 s40, s40, 13
            s_lshr_b32 s43, {S_IDX}, 2
            s_lshl_b32 s43, s43, 10
            s_add_u32 s43, s43, s40
            s_add_u32 s43, s43, {PROBE + 512 * self.role}
            """)
        g(f"""
        s_waitcnt lgkmcnt(0)
        s_memtime s[64:65]
        s_waitcnt lgkmcnt(0)
        s_load_dword s68, s[4:5], s43 glc
        s_waitcnt lgkmcnt(0)
        s_memtime s[66:67]
        s_waitcnt lgkmcnt(0)
        s_sub_u32 s64, s66, s64
        s_min_u32 s46, s46, s64
        """)
        if c == last:
            g(f"""
            s_getreg_b32 s55, hwreg(HW_REG_XCC_ID)
            s_and_b32 s55, s55, 15
            s_lshl_b32 s46, s46, 8
            s_or_b32 s46, s46, s55
            s_add_u32 s40, {S_IDX}, {self.role * 32}
            s_lshl_b32 s40, s40, 7
            s_add_u32 s40, s40, {FL_TAB}
            """)
            g.signal("s40", "s46")
        g(f"{skip}:")

    def census(self):
        g = self.g
        t0, t1, t2 = (f"v{self.pt + k}" for k in range(3))
        g("s_getreg_b32 s55, hwreg(HW_REG_XCC_ID)\ns_and_b32 s55, s55, 15")
        g.flag_addr(t0, FL_TAB, 64)
        g.poll(t0, "0", t1, sleep=1)
        g(f"""
        v_and_b32 {t2}, 15, {t1}
        v_cmp_ne_u32 vcc, s55, {t2}
        s_lshl_b32 s40, s54, 4
        s_lshl_b32 s40, 0xffff, s40
        s_or_b32 s41, vcc_lo, vcc_hi
        s_and_b32 s40, s40, s41
        s_cselect_b32 {S_LX}, 0, {LOCX if g.opt.get('local', 1) else 0}
        """)
        show = lambda: g(f"""
            v_min_u32 {t0}, 3, {LANE}
            v_lshlrev_b32 {t0}, 2, {t0}
            s_mov_b64 exec, 15
            buffer_store_dword {t1}, {t0}, {DBG}, 0 offen offset:80
            s_mov_b64 exec, -1
            """)
        g.pick_sel(S_SEL, t1, t2, show if g.opt.get("times") else None)

    def common_setup(self):
        g = self.g
        t0, t1 = f"v{self.pt}", f"v{self.pt + 1}"
        self.census()
        g(f"""
        s_lshr_b32 s40, {S_WAVE}, 1
        s_mul_i32 s40, s40, {CH}
        s_and_b32 s41, {S_WAVE}, 1
        s_lshl_b32 s41, s41, 10
        s_add_u32 s40, s40, s41
        s_lshl_b32 s41, s54, 12
        s_add_u32 s40, s40, s41
        v_lshl_add_u32 {self.vml}, {LANE}, 4, s40
        v_xor_b32 {self.vmr}, 0x1000, {self.vml}
        v_and_b32 {t0}, 2, {LANE}
        v_cmp_eq_u32 vcc, 0, {t0}
        v_mov_b32 {t0}, 0xeeee
        v_mov_b32 {t1}, 0x4444
        v_cndmask_b32 {self.vidx}, {t0}, {t1}, vcc
        s_lshr_b32 s40, {S_IDX}, 2
        s_mul_i32 s40, s40, {CH}
        s_and_b32 s41, {S_IDX}, 3
        s_lshl_b32 s41, s41, 11
        s_add_u32 s47, s40, s41
        s_lshl_b32 s41, {S_WAVE}, 9
        s_add_u32 s47, s47, s41
        v_lshl_add_u32 {self.vvm}, {LANE}, 3, s47
        s_lshl_b32 s41, s54, 12
        s_add_u32 s40, s41, {TRIG}
        s_add_u32 s40, s40, {S_SEL}
        v_lshrrev_b32 {t0}, 2, {LANE}
        v_lshl_add_u32 {t0}, {t0}, 7, s40
        v_and_b32 {t1}, 3, {LANE}
        v_lshl_add_u32 {self.vtrig}, {t1}, {g.opt.get('fsh', 2)}, {t0}
        s_mov_b32 s57, s40
        s_cmp_eq_u32 {S_LX}, 0
        s_cselect_b32 s56, 1, {S_WAVE}
        s_and_b32 s41, {S_IDX}, 15
        s_lshl_b32 s41, s41, 7
        s_lshl_b32 s40, {S_WAVE}, {g.opt.get('fsh', 2)}
        s_add_u32 s40, s40, s41
        s_add_u32 s40, s40, {self.send_off}
        s_mov_b32 {S_SEG}, 0
        s_mov_b32 s60, 0
        s_mov_b32 s61, 0
        s_mov_b32 {S_FORCE}, -1
        """)
        g.lane0_addr(self.vsnd, "s40")
        for i in range(4): g(f"v_mov_b32 v{self.ones + i}, -1")
        g.trace_setup(self.vtrc)

    def warm_rings(self, items):
        g = self.g
        if not g.opt.get("rwarm", 1): return
        for k in range(4):
            g(f"s_mov_b32 {S_SEG}, {k}")
            g("\n".join(self.step_bases()))
            for va, so, x in items:
                g(f"s_xor_b32 s40, {so}, {x}\nbuffer_load_dword {self.vchk}, {va}, {WS}, s40 offen sc1")
        g(f"buffer_load_dword {self.vchk}, {self.vtrig}, {WS}, 0 offen offset:{2048 - self.send_off} sc1\ns_mov_b32 {S_SEG}, 0")

    def mem_slot(self, dst, add):
        return f"""s_add_u32 {dst}, {S_SEG}, {add + (MEMS >> 16)}
        s_and_b32 s40, {dst}, 0x28
        s_mul_i32 s40, s40, 0x900
        s_and_b32 s40, s40, 0x6000
        s_xor_b32 s40, s40, {S_SEL}
        s_lshl_b32 {dst}, {dst}, 16
        s_add_u32 {dst}, {dst}, s40"""

    def step_bases(self):
        return f"""
        {self.mem_slot(S_MEM, 0)}
        s_lshl_b32 {S_MEML}, {S_LX}, 1
        s_xor_b32 {S_MEML}, {S_MEM}, {S_MEML}
        s_and_b32 s40, {S_SEG}, 3
        s_lshl_b32 s40, s40, 18
        s_add_u32 {S_O}, s40, {S_SEL}
        s_lshr_b32 s40, s40, 5
        s_and_b32 s40, s40, 0x4000
        s_xor_b32 {S_O}, {S_O}, s40
        s_xor_b32 {S_VM}, {S_O}, 0x4000
        """.strip().split("\n")

    def trigger(self, off, own=False):
        g, t = self.g, self.pt
        top, done = g.lab("trig"), g.lab("trigd")
        ld = lambda k: f"buffer_load_dword v{t + k}, {self.vtrig}, {WS}, 0 offen offset:{off} sc1"
        g.flush()
        g(f"""
        {f"s_cmp_eq_u32 {S_LX}, 0" if own else "s_cmp_lg_u32 s56, 0"}
        s_cbranch_scc1 {done}
        {"s_mov_b64 exec, 0xffff" if own else ""}
        s_sleep {g.opt.get("vwait", 4)}
        {ld(0)}
        s_sleep 1
        {ld(1)}
        s_sleep 1
        {ld(2)}
        s_sleep 1
        {top}:
        """)
        g.budget()
        for k in range(4):
            g(f"""
            {ld((k + 3) % 4)}
            s_waitcnt vmcnt(3)
            v_cmp_gt_i32 vcc, {S_SEG}, v{t + k}
            {f's_cbranch_vccz {done}' if k < 3 else f's_cbranch_vccnz {top}'}
            """)
        g(f"""
        {done}:
        {"s_mov_b64 exec, -1" if own else "s_barrier"}
        """)

    def send(self):
        return [f"buffer_store_dword {self.vstep}, {self.vsnd}, {WS}, s57 offen"]

    def sread(self, pos):
        a, b = POS[pos]
        return [f"ds_read_b128 {P4(self.S + 8 * (pos & 3) + 4 * h)}, {self.vsr} offset:{b * 8192 + a * 2048 + h * 1024}" for h in range(2)]

    def aread(self, pos):
        a, b = POS[pos]
        return f"ds_read_b128 {P4(self.A + 4 * (pos & 3))}, {self.vst[a]} offset:{b * 1024}"

    def zero_acc(self):
        for i in range(0, 4 * self.nt, 2): self.g(f"v_mov_b64 {P2(self.acc + i)}, 0")

    def pre_project(self):
        self.zero_acc()
        for pos in range(4):
            for r in self.sread(pos): self.g(r)

    def rloads(self):
        return [f"buffer_load_dwordx4 {P4(self.RM + 4 * b)}, {self.vmr}, {WS}, {S_MEM} offen offset:{b * 2048} sc1" for b in range(2)]

    def project(self, nm, hooks):
        g, nt, A, RM = self.g, self.nt, self.A, self.RM
        q = []

        def ds(ins, tag):
            g(ins); q.append(tag)

        def wait_for(tags):
            last = max((i for i, t in enumerate(q) if t in tags), default=-1)
            if last >= 0:
                g(f"s_waitcnt lgkmcnt({min(15, len(q) - 1 - last)})")
                del q[:last + 1]

        def smf(pos, t):
            b = R("v", self.kept.get(pos, self.S + 8 * (pos & 3)), 8) if t == nt - 1 else self.wt(t, pos)
            a = RM + 4 * (pos - 8) if pos in (8, 9) else A + 4 * (pos & 3)
            return f"v_smfmac_f32_16x16x64_bf16 {P4(self.acc + 4 * t)}, {P4(a)}, {b}, {self.vidx}"

        def group(pos, fill):
            if g.opt.get("sg") == pos: g("s_memtime s[82:83]")
            for i, t in enumerate(self.order):
                g(smf(pos, t))
                for _ in range(-(-len(fill) // (nt - i))):
                    ins, tag = fill.pop(0)
                    if tag: ds(ins, tag)
                    else: g(ins)

        def chk(x, first):
            return [f"v_max3_u32 {self.vchk}, v{x}, v{x + 1}, {'v%d' % (x + 2) if first else self.vchk}",
                    f"v_max3_u32 {self.vchk}, v{x + 2}, v{x + 3}, {self.vchk}"]
        wr = lambda x, b: (f"ds_write_b128 {self.vst[0]}, {P4(x)} offset:{b * 1024}", "w")
        sr = lambda p: [(r, ("S", p)) for r in self.sread(p)] if p < 16 and p not in self.kept else []
        ar = lambda p: [(self.aread(p), ("A", p))]

        g(f"L_{nm}_retry:")
        for b in range(2):
            g(f"buffer_load_dwordx4 {P4(A + 4 * b)}, {self.vml}, {WS}, {S_MEML} offen offset:{b * 2048} sc1\ns_nop 0")
        early = g.opt.get("rl", "g1") == "early"
        if early: g("\ns_nop 0\n".join(self.rloads()))
        g(f"s_waitcnt vmcnt({3 if early else 1}) lgkmcnt(0)")
        g.stamp(1)
        if g.opt.get("rl", "p0") == "p0":
            early = True
            g("\n".join(self.rloads()))
        group(0, [wr(A, 0)] + [(c, None) for c in chk(A, True)])
        g(f"s_waitcnt vmcnt({2 if early else 0})")
        ds(*wr(A + 4, 1))
        for c in chk(A + 4, False): g(c)
        g(f"v_cmp_eq_u32 vcc, -1, {self.vchk}\ns_cbranch_vccnz L_{nm}_bad")
        g("s_waitcnt lgkmcnt(0)\ns_barrier")
        q.clear()
        for p in (2, 3): ds(self.aread(p), ("A", p))
        group(1, [(r, None) for r in ([] if early else self.rloads())] + ar(4) + sr(4))
        rv = g.opt.get("rv", 7)
        for pos in range(2, 16):
            fill = sr(pos + 3)
            if pos + 3 < 8 or (pos >= rv + 2 and 9 < pos + 3 < 16): fill = ar(pos + 3) + fill
            wait_for({("A", pos), ("S", pos)})
            if pos == rv:
                g("s_waitcnt vmcnt(0)")
                self.rcheck = [wr(RM, 2), wr(RM + 4, 3)] + [(c, None) for c in chk(RM, True) + chk(RM + 4, False)]
                self.rcheck.append((f"v_cmp_eq_u32 vcc, -1, {self.vchk}", None))
                ds(*self.rcheck[0])
                group(pos, self.rcheck[1:] + fill)
                g(f"s_cbranch_vccnz L_{nm}_rbad\nL_{nm}_rok:")
                continue
            if pos == rv + 1:
                wait_for({"w"})
                g("s_barrier")
                fill = [x for p in range(10, pos + 4) for x in ar(p)] + fill
            group(pos, fill + hooks.get(pos, []))
        self.q = q

    def stream(self, nm, ring, load, smfs, lds, guards, shift, restart, extra={}, ctr="s61", first=99, idle=None, l1=False, again=False):
        g, W = self.g, len(ring)
        strict = load
        if l1: load = lambda j: strict(j).replace(" sc1", "")
        q, lq, stubs, fill = [], [], [], []
        g(f"L_{nm}_again:")
        nxt = min(first, W - 1)
        for j in range(nxt):
            g(load(j) + "\ns_nop 0"); q.append(load(j))
        if idle: idle(nxt)

        def put(n):
            for _ in range(min(n, len(fill))):
                ins, tag = fill.pop(0)
                g(ins)
                if tag is not None: lq.append(tag)

        def product(j, i):
            if i == len(smfs(j)) - 1 and j in lq:
                last = len(lq) - 1 - lq[::-1].index(j)
                g(f"s_waitcnt lgkmcnt({len(lq) - 1 - last})")
                del lq[:last + 1]
            assert j not in [t for _, t in fill]
            g(smfs(j)[i])
        n = len(smfs(0))
        for j in range(17):
            if j < 16:
                del q[:q.index(load(j))]
                g(f"s_waitcnt vmcnt({len(q) - 1})")
                if j == 0 and not again: g.stamp(self.first_stamp)
                if g.opt.get("inner") and j in (4, 8, 12) and not again: g.stamp(6 + j // 4)
                if j in guards: g(f"v_cmp_eq_u32 vcc, -1, v{ring[j % W]}")
            for i in range(n - shift, n if j else 0):
                product(j - 1, i)
                if i < n - 1: put(1)
            if j == 16: break
            if j in guards:
                stubs.append((j, list(q)))
                g(f"s_cbranch_vccnz L_{nm}_g{j}\nL_{nm}_ok{j}:")
            q.pop(0)
            upto = min(16, j + W, nxt + 2)
            vm = [load(k) for k in range(nxt, upto)] + extra.get(j, [])
            nxt = max(nxt, upto)
            q += vm
            alone = j in guards and g.opt.get("alone", 1) and n > 2
            if not alone: g("\n".join(vm))
            fill += lds(j)
            if not vm and not alone: put(1)
            for i in range(n - shift):
                product(j, i)
                if alone and i == 0:
                    g("\n".join(vm))
                    if not vm and len(fill) > 2: put(1)
                if i < n - shift - 1 or j + 1 not in guards: put(1)
        put(99)
        if again: return
        g(f"L_{nm}_join:")
        verdict = f"s_cbranch_vccnz L_{nm}_nan\nL_{nm}_done:"

        def cold():
            g(f"""
            L_{nm}_nan:
            s_cmp_eq_u32 {S_FORCE}, {S_SEG}
            s_cbranch_scc1 L_{nm}_done
            s_mov_b32 {S_FORCE}, {S_SEG}
            s_add_u32 {ctr}, {ctr}, 0x10000
            s_waitcnt vmcnt(0) lgkmcnt(0)
            """)
            for j0 in range(0, 16, 4):
                g(f"L_{nm}_v{j0}:")
                g.budget()
                for j in range(j0, j0 + 4): g(strict(j))
                g(f"v_mov_b32 {self.vchk}, 0\ns_waitcnt vmcnt(0)")
                for j in range(j0, j0 + 4):
                    x = ring[j % W]
                    g(f"v_max3_u32 {self.vchk}, v{x}, v{x + 1}, {self.vchk}\nv_max3_u32 {self.vchk}, v{x + 2}, v{x + 3}, {self.vchk}")
                g(f"v_cmp_eq_u32 vcc, -1, {self.vchk}\ns_cbranch_vccnz L_{nm}_v{j0}")
            restart()
            self.stream(nm + "S", ring, strict, smfs, lds, [], shift, None, extra, first=first, again=True)
            g.flush()
            g(f"s_branch L_{nm}_join")
            for j, qq in stubs:
                x = ring[j % W]
                g(f"L_{nm}_g{j}:")
                g.budget()
                g(f"""
                s_add_u32 {ctr}, {ctr}, {1 if j < 8 else 0x100}
                {strict(j)}
                s_waitcnt vmcnt(0)
                v_cmp_eq_u32 vcc, -1, v{x}
                s_cbranch_vccnz L_{nm}_g{j}
                """)
                rest = [ring[k % W] for k in range(j + 1, 16) if load(k) in qq]
                if rest and g.opt.get("smart", 1):
                    g(f"v_mov_b32 {self.vchk}, 0")
                    for a, b in zip(rest[::2], (rest + rest[-1:])[1::2]): g(f"v_max3_u32 {self.vchk}, v{a}, v{b}, {self.vchk}")
                    g(f"v_cmp_eq_u32 vcc, -1, {self.vchk}\ns_cbranch_vccz L_{nm}_ok{j}")
                for ins in qq[1:]: g(ins + (" sc1" if "load" in ins and "sc1" not in ins else "") + "\ns_nop 0")
                g(f"s_branch L_{nm}_ok{j}")
        return verdict, cold

    def bad_stubs(self, nm):
        g = self.g
        g(f"L_{nm}_bad:\ns_nop 7")
        g.budget()
        g("s_add_u32 s60, s60, 1")
        self.zero_acc()
        g.flush()
        g(f"s_branch L_{nm}_retry\nL_{nm}_rbad:")
        g.budget()
        g("s_add_u32 s60, s60, 0x10000\ns_waitcnt lgkmcnt(0)")
        for r in self.rloads(): g(r)
        g("s_waitcnt vmcnt(0)")
        for ins, _ in self.rcheck: g(ins)
        g(f"s_waitcnt lgkmcnt(0)\ns_cbranch_vccnz L_{nm}_rbad\ns_branch L_{nm}_rok")

    def report(self, slot):
        g = self.g
        if not g.opt.get("times"): return
        skip = g.lab("norep")
        g(f"""
        s_lshl_b32 s40, {S_IDX}, 2
        s_add_u32 s40, s40, {S_WAVE}
        s_cmp_lg_u32 s40, 0
        s_cbranch_scc1 {skip}
        v_mov_b32 v{self.pt}, {slot * 4}
        v_mov_b32 v{self.pt + 2}, s60
        v_mov_b32 v{self.pt + 3}, s61
        buffer_store_dwordx2 {P2(self.pt + 2)}, v{self.pt}, {DBG}, 0 offen
        s_lshl_b32 s40, {S_LX}, 4
        s_or_b32 s40, s40, {S_SEL}
        v_mov_b32 v{self.pt + 1}, s40
        v_mov_b32 v{self.pt}, {DBG_SEL}
        buffer_store_dword v{self.pt + 1}, v{self.pt}, {DBG}, 0 offen
        s_waitcnt vmcnt(0)
        {skip}:
        """)


class QK(Rec):
    role, nt, order, send_off = 0, 4, (0, 2, 1, 3), 2048

    def wt(self, t, pos, n=8, p=0):
        return wreg(t * 128 + pos * 8 + 2 * p, n)

    def emit(self):
        g, v = self.g, self.v
        VX = v.get(8, 4)
        VM, ONE = v.get(4, 4), v.get(4, 4)
        Z = v.get(10, 2)
        PA, PB, PC, PD = Z + 2, Z + 6, Z, Z + 4
        v16, vopub, vtw = (f"v{v.get()}" for _ in range(3))
        vtr = [f"v{v.get()}" for _ in range(4)]
        A, S, acc, RM = self.A, self.S, self.acc, self.RM
        t0, t1 = f"v{self.pt}", f"v{self.pt + 1}"
        NEG, MASK = self.vml, [f"s[{k}:{k + 1}]" for k in (8, 10, 16, 18, 42, 100, 52, 54)]
        g("L_QK:")
        vl = self.addr_setup()
        g(f"s_lshl_b32 s44, {S_IDX}, 8\ns_add_u32 s45, s44, 128")
        dst = lambda t: (lambda pos, p: self.wt(t, pos, 2, p))
        srd = lambda t: (lambda: g.srd(WW, K_WK if t >> 1 else K_WQ, 8 << 20))
        self.sparse_loader([self.mem_round(vl, "s45" if t & 1 else "s44", dst(t) if t < 3 else None, srd(t))
                            for t in [int(c) for c in g.opt.get("ro", "r201")[1:]] + [3]])
        g.dbg_time(1, t0, t1)
        self.common_setup()
        for r in list(range(Z, Z + 10)) + [VM + 2, VM + 3]: g(f"v_mov_b32 v{r}, 0")
        for i in range(4): g(f"v_mov_b32 v{ONE + i}, 0x3f803f80")
        TX = STAGE + 16384 + 2048
        g(f"""
        v_lshlrev_b32 {v16}, 4, {LANE}
        s_lshl_b32 s58, {S_WAVE}, 12
        s_add_u32 s40, s58, {TX}
        s_add_u32 s58, s58, {STAGE}
        v_lshrrev_b32 {t0}, 4, {LANE}
        v_bfe_u32 {t1}, {LANE}, 2, 2
        v_xor_b32 {t1}, {t0}, {t1}
        v_lshl_add_u32 {vtw}, {t1}, 3, s40
        v_and_b32 {t1}, 15, {LANE}
        v_lshl_add_u32 {vtw}, {t1}, 5, {vtw}
        v_xor_b32 {t0}, {t0}, {LANE}
        v_lshl_add_u32 {vtr[0]}, {t0}, 3, s40
        v_bfe_u32 {t0}, {LANE}, 4, 1
        v_lshlrev_b32 {t0}, 1, {t0}
        v_and_b32 {t1}, 13, {LANE}
        v_or_b32 {t0}, {t0}, {t1}
        v_lshl_add_u32 {vopub}, {t0}, 4, s47
        v_lshrrev_b32 {t0}, 5, {LANE}
        v_lshl_add_u32 {vopub}, {t0}, 8, {vopub}
        v_and_b32 {t0}, 2, {LANE}
        v_cmp_eq_u32 vcc, 0, {t0}
        v_mov_b32 {t1}, {OOB}
        v_cndmask_b32 {vopub}, {vopub}, {t1}, vcc
        s_lshl_b32 s43, {S_IDX}, 2
        s_add_u32 s43, s43, {S_WAVE}
        s_and_b32 s49, {S_WAVE}, 1
        s_lshl_b32 s49, s49, 10
        s_mul_i32 s32, {S_IDX}, {THEAD}
        s_lshl_b32 s40, {S_WAVE}, 11
        s_add_u32 s32, s32, s40
        s_and_b32 s40, {S_SEL}, 0x2000
        s_xor_b32 s40, s40, {TOK + g.opt.get("far", 0) * 0x2000}
        s_add_u32 s32, s32, s40
        s_add_u32 s30, s32, s49
        s_add_u32 s30, s30, {3 * TPART}
        s_lshr_b32 s59, {S_IDX}, 1
        s_lshl_b32 s59, s59, 7
        s_add_u32 s59, s59, {FL_QKV}
        s_lshl_b32 s62, {S_IDX}, 7
        s_add_u32 s62, s62, {FL_QK}
        s_mov_b32 s38, {fbits(SM_SCALE)}
        s_mov_b32 s39, s38
        """)
        for a in range(1, 4): g(f"v_xor_b32 {vtr[a]}, {a << 12}, {vtr[0]}")
        g(f"""
        v_readfirstlane_b32 s88, {self.vml}
        s_xor_b32 s41, s47, {4 * CH}
        v_min_u32 {t0}, 3, {LANE}
        v_lshl_add_u32 {self.vmr}, {t0}, 7, s41
        v_lshrrev_b32 {t0}, 4, {LANE}
        v_lshlrev_b32 {t0}, 2, {t0}
        v_and_b32 {t1}, 15, {LANE}
        v_sub_u32 {t0}, {t1}, {t0}
        s_lshr_b32 s41, s49, 6
        v_add_u32 {t0}, s41, {t0}
        v_and_b32 {self.vvm}, 0xfffffdff, {self.vvm}
        v_mov_b32 {NEG}, {fbits(-1e9 * 128 ** 0.5)}
        """)
        for k in range(8): g(f"v_cmp_le_i32 {MASK[k]}, {16 * (k >> 2) + (k & 3)}, {t0}")
        for a in range(1, 4): g(f"s_xor_b32 s{88 + a}, s88, {(a >> 1) * CH + (a & 1) * 1024}")
        ask = "s_load_dwordx4 s[44:47], s[4:5], s59 glc"

        def ready():
            top, have, skip = g.lab("ask"), g.lab("have"), g.lab("skip")
            g(f"""
            s_cmp_lg_u32 {S_WAVE}, 1
            s_cbranch_scc1 {skip}
            {top}:
            s_min_i32 s50, s44, s45
            s_min_i32 s50, s50, s46
            s_min_i32 s50, s50, s47
            s_cmp_ge_i32 s50, s33
            s_cbranch_scc1 {have}
            {ask}
            """)
            g.budget()
            g(f"""
            s_waitcnt lgkmcnt(0)
            s_branch {top}
            {have}:
            s_add_u32 s33, s33, 2
            s_min_u32 s33, s33, {NSEG}
            s_cmp_ge_i32 s50, s33
            s_cbranch_scc1 {skip}
            {ask}
            {skip}:
            s_barrier
            """)
        dma = lambda off: f"buffer_load_dwordx4 {v16}, {WS}, s31 offen offset:{off} sc1 lds"
        fetch = [f"s_add_u32 m0, s58, 16384\ns_add_u32 s31, s32, {TPART}\n{dma(0)}", dma(1024),
                 f"s_add_u32 m0, s58, 2048\ns_add_u32 s31, s32, {2 * TPART}\n{dma(0)}", dma(1024),
                 f"s_mov_b32 m0, s58\ns_add_u32 s31, s32, s49\n{dma(0)}", f"s_sub_u32 s31, s32, s49\n{dma(1024)}"]
        bases = self.step_bases() + [f"s_xor_b32 s34, {S_O}, 0x84000", f"s_xor_b32 s48, {S_O}, {LOCX}",
                                     "s_lshr_b32 s40, s49, 1", f"s_add_u32 {S_VM}, {S_VM}, s40", f"s_xor_b32 s35, {S_VM}, 512"]
        for a in range(4):
            bases += [f"s_add_u32 s{92 + a}, {S_MEML}, s{88 + a}", f"s_add_u32 s{96 + a}, {S_MEM}, s{88 + a}",
                      f"s_xor_b32 s{96 + a}, s{96 + a}, 0x1000"]
        allw = g.opt.get("fa", "w1") not in ("bar", "pub")
        if allw:
            g(f"""
            v_lshrrev_b32 {t0}, 4, {LANE}
            v_lshl_add_u32 {t0}, {t0}, 7, s57
            v_and_b32 {t1}, 15, {LANE}
            v_lshl_add_u32 {self.vtrig}, {t1}, 2, {t0}
            """)
        self.warm_rings([(vopub, S_O, LOCX)])
        g.dbg_time(19, t0, t1)
        g("s_mov_b32 s33, 1\ns_mov_b64 s[44:45], 0\ns_mov_b64 s[46:47], 0")
        ready()
        g.dbg_time(14, t0, t1)
        g("\n".join(fetch + bases))
        g.phase("pq")
        g(f";@hot\nL_QK_top:\nv_mov_b32 {self.vstep}, {S_SEG}")
        self.pre_project()
        if not g.opt.get("inner"): g.stamp(6)
        g(f"""
        s_waitcnt lgkmcnt(0)
        s_and_b32 s40, {S_SEG}, {NSEG - 1}
        s_cselect_b32 s40, s56, 1
        s_cmp_lg_u32 s40, 0
        s_cbranch_scc1 L_QK_park
        v_mov_b32 {t0}, -1
        {"" if allw else "s_mov_b64 exec, 0xffff"}
        s_sleep {g.opt.get("qwait", 4)}
        L_QK_spin:
        """)
        g.budget()
        g("s_waitcnt vmcnt(40)")
        for k in range(4):
            g(f"""
            buffer_load_dword {t0}, {self.vtrig}, {WS}, 0 offen sc1
            s_nop {g.opt.get("spin", 3)}
            v_cmp_gt_i32 vcc, {S_SEG}, {t0}
            {"s_cbranch_vccz L_QK_rel" if k < 3 else "s_cbranch_vccnz L_QK_spin"}
            """)
        g("L_QK_rel:\ns_barrier\ns_mov_b64 exec, -1")
        g("L_QK_go:")
        g.stamp(0)
        fb = g.opt.get("fb", "cvt")
        vmload = lambda k: f"buffer_load_dwordx2 {P2(VM + 2 * k)}, {self.vvm}, {WS}, {(S_VM, 's35')[k]} offen sc1"
        vmchk = lambda k: [f"v_max_u32 {self.vchk}, v{VM + 2 * k}, v{VM + 2 * k + 1}", f"v_cmp_eq_u32 vcc, -1, {self.vchk}"]
        KX = [S, S + 8, S + 16, RM]
        kx = lambda a: [f"ds_read_b128 {P4(KX[a] + 4 * kt)}, {self.vst[a]} offset:{16384 + kt * 1024}" for kt in range(2)]
        ring = [A, A + 4, A + 8, A + 12, RM, RM + 4]
        QW = len(ring)

        def load(j):
            a, b = POS[j]
            return f"buffer_load_dwordx4 {P4(ring[j % QW])}, {v16}, {WS}, s{(92 if b < 2 else 96) + a} offen offset:{(b & 1) * 2048} sc1"

        def smfs(j):
            return [f"v_smfmac_f32_16x16x64_bf16 {P4(acc + 4 * t)}, {P4(ring[j % QW])}, "
                    f"{R('v', S + 8 * (j & 3), 8) if t == 3 else self.wt(t, j)}, {self.vidx}" for t in self.order]

        def lds(j):
            if j == 0: return []
            if j < 13: return [(r, j + 3) for r in self.sread(j + 3)]
            return [(r, -1) for r in {13: kx(0) + kx(3)[:1], 14: kx(1) + kx(3)[1:], 15: kx(2)}[j]]
        def report(n):
            for T in range(2): g(f"ds_read_b128 {P4(VX + 4 * T)}, {self.vst[0]} offset:{2048 + T * 1024}")
            g(f"s_cmp_lg_u32 {S_WAVE}, 0\ns_cbranch_scc1 L_QK_sigd\ns_mov_b32 s63, {S_SEG}\ns_waitcnt vmcnt({n})")
            g("s_atomic_smax s63, s[4:5], s62 glc\nL_QK_sigd:")
        self.first_stamp = 1
        verdict, cold = self.stream("QKM", ring, load, smfs, lds, bits(g.opt.get("qm", "xffff")), g.opt.get("qs", 2),
                                    lambda: (self.pre_project(), g("s_waitcnt lgkmcnt(0)")), ctr="s60", first=g.opt.get("qf", 5), idle=report, l1=g.opt.get('l1', 1))

        def point(name):
            if fb == name: g("\n".join(self.send()))
        g.stamp(2)
        point("proj")
        T16 = self.pt
        for T in range(2):
            for t in (T, 2 + T):
                g(f"v_pk_add_f32 {P2(acc + 4 * t)}, {P2(acc + 4 * t)}, {P2(acc + 4 * t + 2)}")
            if T == 0: g(f"v_cmp_u_f32 vcc, v{acc}, v{acc + 1}")
            for j, t in ((1, T), (0, 2 + T)):
                g(f"v_cvt_pk_bf16_f32 v{T16 + 2 * T + j}, v{acc + 4 * t}, v{acc + 4 * t + 1}")
            g(f"ds_write_b64 {vtw}, {P2(T16 + 2 * T)} offset:{512 * T}")
        fread = lambda a: "\n".join(f"ds_read_b64_tr_b16 {P2(A + 4 * a + 2 * T)}, {vtr[a]} offset:{512 * T}" for T in range(2))
        sp = lambda k: f"s_memtime s[82:83]" if g.opt.get("sp") == k else ""
        g(f"""
        {sp(1)}
        {fread(0)}
        {verdict}
        s_waitcnt lgkmcnt(2)
        {sp(2)}
        s_barrier
        {sp(3)}
        {fread(1)}
        """)
        S0, S1, SM = acc, acc + 4, acc + 8
        gaps = {0: fread(2), 1: fread(3)}
        gaps[g.opt.get("vm0", 9)] = vmload(0)
        for a in range(4):
            g(f"s_waitcnt lgkmcnt({(2, 4, 2, 0)[a]})")
            g(sp(4 + a))
            for i, (d, x) in enumerate(((S0, KX[a]), (S1, KX[a] + 4), (SM, A + 4 * a))):
                g(f"v_mfma_f32_16x16x32_bf16 {P4(d)}, {P4(x)}, {P4(A + 4 * a)}, {P4(d) if a else '0'}")
                g(gaps.get(3 * a + i, ""))
        g.stamp(3)
        point("score")
        m = acc + 12
        PX, O, L, OUT = self.pt, S + 24, acc + 12, acc
        fma = lambda r: f"v_pk_fma_f32 {P2(r)}, {P2(r)}, s[38:39], {P2(m)} op_sel_hi:[1,1,0] neg_lo:[0,0,1] neg_hi:[0,0,1]"
        up, dn = "quad_perm:[2,3,2,3] row_mask:0xf bank_mask:0xf", "quad_perm:[0,1,0,1] row_mask:0xf bank_mask:0xf"
        mix = lambda d, x: f"v_cndmask_b32_dpp v{d}, v{x}, v{d}, vcc {up}"
        g(f"""
        s_mov_b32 vcc_lo, 0xcccccccc
        s_mov_b32 vcc_hi, 0xcccccccc
        v_mov_b32 v{PX + 3}, s38
        v_max3_f32 v{m}, v{S0}, v{S0 + 1}, v{S0 + 2}
        v_max3_f32 v{m + 1}, v{S0 + 3}, v{S0 + 4}, v{S0 + 5}
        v_max3_f32 v{m}, v{m}, v{S0 + 6}, v{S0 + 7}
        v_max3_f32 v{m + 1}, v{m + 1}, v{S0 + 8}, v{S0 + 9}
        v_max_f32 v{m + 2}, v{m}, v{m + 1}
        v_max_f32 v{m + 3}, v{m}, v{m + 1}
        {mix(SM, SM + 1)}
        {mix(S0, S1)}
        {sp(10)}
        v_permlane16_swap_b32 v{m + 2}, v{m + 3}
        v_max_f32 v{m}, v{m + 2}, v{m + 3}
        v_max_f32 v{m + 1}, v{m + 2}, v{m + 3}
        {mix(S0 + 1, S1 + 1)}
        {mix(S0 + 2, S1 + 2)}
        v_permlane32_swap_b32 v{m}, v{m + 1}
        v_max_f32 v{m}, v{m}, v{m + 1}
        {mix(S0 + 3, S1 + 3)}
        v_mul_f32_dpp v{m}, v{m}, v{PX + 3} {up}
        """)
        snd = lambda p: self.send()[0] if fb == p else ""
        g(f"""
        {sp(11)}
        {fma(S0)}
        {fma(S0 + 2)}
        v_exp_f32 v{S0}, v{S0}
        v_exp_f32 v{S0 + 1}, v{S0 + 1}
        v_exp_f32 v{S0 + 2}, v{S0 + 2}
        v_cvt_pk_bf16_f32 v{PX}, v{S0}, v{S0 + 1}
        v_exp_f32 v{S0 + 3}, v{S0 + 3}
        v_fma_f32 v{SM}, v{SM}, s38, -v{m}
        v_cvt_pk_bf16_f32 v{PX + 1}, v{S0 + 2}, v{S0 + 3}
        v_mov_b32_dpp v{PX + 2}, v{PX} {dn}
        v_exp_f32 v{SM}, v{SM}
        v_mov_b32_dpp v{PX + 3}, v{PX + 1} {dn}
        s_nop 0
        v_mov_b32_dpp v{SM + 1}, v{SM} {dn}
        {sp(12)}
        v_mfma_f32_16x16x32_bf16 {P4(L)}, {P4(ONE)}, {P4(PX)}, 0
        v_cvt_pk_bf16_f32 v{PA}, v{SM}, v{SM + 1}
        v_cvt_pk_bf16_f32 v{PB + 1}, v{SM}, v{SM + 1}
        s_waitcnt vmcnt(0)
        {sp(13)}
        v_mfma_f32_16x16x32_bf16 {P4(O)}, {P4(VX)}, {P4(PX)}, 0
        {vmchk(0)[0]}
        {vmchk(0)[1]}
        v_mfma_f32_16x16x32_bf16 {P4(L)}, {P4(ONE)}, {P4(PA)}, {P4(L)}
        {snd("exp2")}
        v_mfma_f32_16x16x32_bf16 {P4(O + 4)}, {P4(VX + 4)}, {P4(PX)}, 0
        s_cbranch_vccnz L_QK_vbad0
        L_QK_vok0:
        {sp(14)}
        {snd("cvt")}
        v_mfma_f32_16x16x32_bf16 {P4(O)}, {P4(VM)}, {P4(PA)}, {P4(O)}
        {snd("pv1")}
        v_mfma_f32_16x16x32_bf16 {P4(O + 4)}, {P4(VM)}, {P4(PB)}, {P4(O + 4)}
        """)
        point("pv")
        g(sp(15))
        g(f"v_rcp_f32 v{L}, v{L}")
        point("rcp")
        for k in range(4):
            g(f"v_pk_mul_f32 {P2(O + 2 * k)}, {P2(O + 2 * k)}, {P2(L)} op_sel_hi:[1,0]")
        for k in range(4): g(f"v_cvt_pk_bf16_f32 v{OUT + k}, v{O + 2 * k}, v{O + 2 * k + 1}")
        g.stamp(4)
        g(f"buffer_store_dwordx4 {P4(OUT)}, {vopub}, {WS}, s48 offen")
        point("pub")
        Q, VP = [S + 24, S + 28, S, S + 8], [S + 4, S + 12]
        qread = lambda a: f"ds_read_b128 {P4(Q[a])}, {self.vst[a]} offset:{(a & 1) * 1024}"
        T0, T1, TM = acc + 4, acc + 8, acc + 12
        g(f"""
        {qread(0)}
        {qread(1)}
        s_add_u32 s32, s32, {TSEG}
        s_xor_b32 s32, s32, 0x2000
        s_add_u32 s33, {S_SEG}, 2
        s_min_u32 s33, s33, {NSEG}
        s_waitcnt lgkmcnt(0)
        {vmload(1)}
        buffer_store_dwordx4 {P4(OUT)}, {vopub}, {WS}, {S_O} offen sc1
        """)
        for a in range(4):
            if a > 1: g(f"s_waitcnt lgkmcnt({3 if a == 2 else 0})")
            for d, x in ((T0, KX[a]), (T1, KX[a] + 4), (TM, A + 4 * a)):
                g(f"v_mfma_f32_16x16x32_bf16 {P4(d)}, {P4(x)}, {P4(Q[a])}, {P4(d) if a else '0'}")
            if a < 2: g(f"{qread(a + 2)}\nds_read_b128 {P4(VP[a])}, {self.vst[1]} offset:{2048 + a * 1024}")
        ready()
        g.stamp(5)
        FF, M, PXT = self.ones, RM + 4, S + 16
        vm_ops = list(fetch)
        if g.opt.get("touch", 13) >= 10:
            vm_ops = [""] * (g.opt.get("touch", 13) - 10) + [f"buffer_load_dword {t1}, {self.vmr}, {WS}, {S_O} offen sc1"] + vm_ops
        vm_ops += self.both("buffer_store_dwordx4", P4(FF), vopub, "s34")
        valu = [f"v_cndmask_b32 v{T0 + k}, {NEG}, v{T0 + k}, {MASK[k]}" for k in range(8)]
        valu += [f"v_max3_f32 v{M}, v{T0}, v{T0 + 1}, v{T0 + 2}", f"v_max3_f32 v{M + 1}, v{T0 + 3}, v{T0 + 4}, v{T0 + 5}",
                 f"v_max3_f32 v{M}, v{M}, v{T0 + 6}, v{T0 + 7}", f"v_max3_f32 v{M + 1}, v{M + 1}, v{T0 + 8}, v{T0 + 9}",
                 f"v_max_f32 v{M + 2}, v{M}, v{M + 1}", f"v_max_f32 v{M + 3}, v{M}, v{M + 1}",
                 f"v_permlane16_swap_b32 v{M + 2}, v{M + 3}",
                 f"v_max_f32 v{M}, v{M + 2}, v{M + 3}", f"v_max_f32 v{M + 1}, v{M + 2}, v{M + 3}",
                 f"v_permlane32_swap_b32 v{M}, v{M + 1}", f"v_max_f32 v{M}, v{M}, v{M + 1}", f"v_mul_f32 v{M}, s38, v{M}"]
        valu += [f"v_pk_fma_f32 {P2(T0 + 2 * k)}, {P2(T0 + 2 * k)}, s[38:39], {P2(M)} op_sel_hi:[1,1,0] neg_lo:[0,0,1] neg_hi:[0,0,1]" for k in range(5)]
        valu += [f"v_exp_f32 v{T0 + k}, v{T0 + k}" for k in range(10)]
        valu += [f"v_cvt_pk_bf16_f32 v{PXT + k}, v{T0 + 2 * k}, v{T0 + 2 * k + 1}" for k in range(4)]
        valu += [f"v_cvt_pk_bf16_f32 v{d}, v{TM}, v{TM + 1}" for d in (PA, PB + 1)]
        newer = 1 + sum(1 for op in vm_ops if op)
        valu[-6:-6] = [f"s_waitcnt vmcnt({newer})\n" + vmchk(1)[0], vmchk(1)[1]]
        valu.append("s_cbranch_vccnz L_QK_vbad1\nL_QK_vok1:")
        gap = g.opt.get("hkgap", 2)
        assert gap * len(vm_ops) < len(valu) - 9
        for i, ins in enumerate(valu):
            if i % gap == 0 and vm_ops: g(vm_ops.pop(0))
            g(ins)
        for op in vm_ops: g(op)
        if not g.opt.get("inner"): g.stamp(7)
        LT = S + 20
        g(f"s_add_u32 {S_SEG}, {S_SEG}, 1\ns_xor_b32 s41, s30, 2048")
        salu = list(bases)
        mm = [(LT, ONE, PXT, 0)] + [(acc + 4 * k, x, PXT, 0) for k, x in enumerate((VX, VX + 4, VP[0], VP[1]))]
        mm += [(LT, ONE, PA, 1)] + [(acc + 4 * k, VM, p, 1) for k, p in enumerate((PA, PB, PC, PD))]
        for d, x, y, c in mm:
            g(f"v_mfma_f32_16x16x32_bf16 {P4(d)}, {P4(x)}, {P4(y)}, {P4(d) if c else '0'}")
            for _ in range(3):
                if salu: g(salu.pop(0))
        g("\n".join(salu + [f"v_rcp_f32 v{LT}, v{LT}"]))
        for h, so in enumerate(("s30", "s41")):
            for k in range(4 * h, 4 * h + 4): g(f"v_pk_mul_f32 {P2(acc + 2 * k)}, {P2(acc + 2 * k)}, {P2(LT)} op_sel_hi:[1,0]")
            for k in range(4 * h, 4 * h + 4): g(f"v_cvt_pk_bf16_f32 v{A + k}, v{acc + 2 * k}, v{acc + 2 * k + 1}")
            g(f"buffer_store_dwordx4 {P4(A + 4 * h)}, {v16}, {WS}, {so} offen sc1")
        g(f"s_add_u32 s30, s30, {TSEG}\ns_xor_b32 s30, s30, 0x2000")
        if not g.opt.get("inner"): g.stamp(8)
        g.trace_flush(S + 24, drain=False, back=1)
        g.flush()
        g(f"""
        s_branch L_QK_top
        ;@end
        L_QK_park:
        """)
        if g.opt.get("steps"):
            g(f"s_memrealtime s[64:65]\ns_and_b32 m0, {S_SEG}, 63\ns_waitcnt lgkmcnt(0)\nv_writelane_b32 {self.vtrc}, s64, m0")
        g(f"""
        s_waitcnt vmcnt(0)
        s_cmp_lt_u32 {S_SEG}, {NSEG}
        s_cbranch_scc1 L_QK_rel
        s_barrier
        """)
        g.signal("s62", S_SEG, 0)
        if g.opt.get("steps"):
            g(f"s_lshl_b32 s40, {S_IDX}, 2\ns_add_u32 s40, s40, {S_WAVE}\ns_lshl_b32 s40, s40, 8\ns_add_u32 s40, s40, {TRACE}")
            g(f"v_lshlrev_b32 {t0}, 2, {LANE}\nbuffer_store_dword {self.vtrc}, {t0}, {WS}, s40 offen")
        g.dbg_time(8, t0, t1)
        self.report(10)
        g("s_branch L_END")
        cold()
        for k in range(2):
            g(f"L_QK_vbad{k}:")
            g.budget()
            g(f"""
            s_add_u32 s61, s61, 1
            {vmload(k)}
            s_waitcnt vmcnt(0)
            {vmchk(k)[0]}
            {vmchk(k)[1]}
            s_cbranch_vccnz L_QK_vbad{k}
            s_branch L_QK_vok{k}
            """)


class VO(Rec):
    role, nt, order, send_off = 1, 2, (0, 1), 0

    def wt(self, t, pos, n=8, p=0):
        return R("v", 128 + pos * 8 + 2 * p, n)

    def wo(self, pos, T, n=8, p=0):
        return R("a", (2 * pos + T) * 8 + 2 * p, n)

    def emit(self):
        g, v = self.g, self.v
        A, S, acc, RM = self.A, self.S, self.acc, self.RM
        W = g.opt.get("owin", 7)
        extra = v.get(4 * (W - 6), 4) if W > 6 else 0
        ring = [A, A + 4, A + 8, A + 12, RM, RM + 4] + [extra + 4 * k for k in range(W - 6)]
        T4 = v.get(8, 4)
        vrw, vrr, vrr2, vmpub = (f"v{v.get()}" for _ in range(4))
        vo = [f"v{v.get()}" for _ in range(4)]
        t0, t1, t2 = f"v{self.pt}", f"v{self.pt + 1}", f"v{self.pt + 2}"
        g("L_VO:")
        vl = self.addr_setup()
        g(f"s_lshl_b32 s44, {S_IDX}, 8\ns_add_u32 s45, s44, 128")
        g.srd(WW, K_WV, 8 << 20)
        self.sparse_loader([self.mem_round(vl, "s44", lambda pos, p: self.wt(0, pos, 2, p)), self.mem_round(vl, "s45", None)])
        g(f"s_lshr_b32 s40, {S_IDX}, 1\ns_lshl_b32 s40, s40, 2")
        g.flag_addr(t0, FL_WOF, 4, "s40")
        g.poll(t0, "1", t1, sleep=1)
        g(f"""
        s_lshl_b32 s40, {S_IDX}, 18
        s_lshl_b32 s41, {S_WAVE}, 15
        s_add_u32 s40, s40, s41
        v_lshl_add_u32 {t0}, {LANE}, 4, s40
        s_add_u32 s50, {S_IDX}, {S_WAVE}
        s_and_b32 s50, s50, {g.opt.get('rot', 3)}
        s_lshl_b32 s41, s54, 5
        s_add_u32 s41, s41, s50
        s_lshl_b32 s41, s41, 12
        """)
        for pos in range(16):
            g(f"s_xor_b32 s40, s41, {((pos >> 3) << 17) + (pos & 7) * 4096}\ns_add_u32 s40, s40, {WOF}")
            for k in range(4):
                g(f"buffer_load_dwordx4 {R('a', pos * 16 + 4 * k, 4)}, {t0}, {WS}, s40 offen offset:{k * 1024} sc1")
            g(f"s_waitcnt vmcnt({g.opt.get('pw', 32)})")
        g.dbg_time(7, t0, t1)
        g.tlb_warm(t1, t2)
        self.common_setup()
        va, vn = f"v{A}", f"v{A + 1}"
        allw = g.opt.get("fa", "w1") not in ("bar", "pub")
        g(f"""
        s_mul_i32 s40, {S_WAVE}, {CH}
        s_and_b32 s41, s50, 3
        s_lshl_b32 s41, s41, 10
        s_add_u32 s40, s40, s41
        v_lshl_add_u32 {vo[0]}, {LANE}, 4, s40
        v_xor_b32 {vo[1]}, 0x400, {vo[0]}
        v_xor_b32 {vo[2]}, 0x800, {vo[0]}
        v_xor_b32 {vo[3]}, 0xc00, {vo[0]}
        s_mul_i32 s58, s54, {4 * CH}
        s_and_b32 s41, s50, 4
        s_lshl_b32 s41, s41, 10
        s_add_u32 s58, s58, s41
        s_bfe_u32 s40, {S_IDX}, 0x20002
        s_lshl_b32 s40, s40, 7
        s_and_b32 s41, {S_IDX}, 3
        s_lshl_b32 s41, s41, {4 if allw else 2}
        s_add_u32 s40, s40, s41
        s_lshl_b32 s41, {S_WAVE}, 2
        s_add_u32 s41, s41, s40
        s_cmp_eq_u32 {S_WAVE}, 0
        s_cselect_b32 s40, s40, {"s41" if allw else OOB}
        s_mov_b64 exec, 1
        v_mov_b32 {self.vsnd}, s40
        s_mov_b64 exec, -1
        s_mul_i32 s40, {S_WAVE}, {512 if g.opt.get("own", 1) else 0}
        v_add_u32 {self.vtrig}, s40, {self.vtrig}
        v_bfe_u32 {t0}, {LANE}, 2, 2
        v_xor_b32 {t0}, {S_WAVE}, {t0}
        v_lshlrev_b32 {t0}, 3, {t0}
        v_lshl_add_u32 {t0}, {LANE}, 5, {t0}
        v_add_u32 {vrw}, {STAGE + 16384}, {t0}
        s_and_b32 s40, {S_WAVE}, 1
        s_lshl_b32 s40, s40, 3
        v_bfe_u32 {va}, {LANE}, 2, 3
        v_add_u32 {va}, s40, {va}
        s_lshr_b32 s40, {S_WAVE}, 1
        s_lshl_b32 s40, s40, 3
        v_and_b32 {vn}, 3, {LANE}
        v_add_u32 {vn}, s40, {vn}
        v_bfe_u32 {t0}, {va}, 1, 1
        v_lshl_add_u32 {vn}, {t0}, 2, {vn}
        v_lshrrev_b32 {t0}, 2, {va}
        v_and_b32 {t1}, 1, {va}
        v_lshl_add_u32 {t2}, {t0}, 4, {vn}
        v_lshlrev_b32 {t2}, 5, {t2}
        v_mul_u32_u24 {t1}, {2048 + 16}, {t1}
        v_add_u32 {t2}, {t1}, {t2}
        v_add_u32 {vrr}, {STAGE + 16384}, {t2}
        v_xor_b32 {vrr2}, 16, {vrr}
        s_bfe_u32 s41, {S_IDX}, 0x10002
        s_mul_i32 s41, s41, {CH}
        s_lshr_b32 s40, {S_IDX}, 3
        s_lshl_b32 s40, s40, 11
        s_add_u32 s40, s40, s41
        s_and_b32 s41, {S_IDX}, 3
        s_lshl_b32 s41, s41, 9
        s_add_u32 s40, s40, s41
        s_lshl_b32 s41, {S_WAVE}, 7
        s_add_u32 s40, s40, s41
        v_lshl_add_u32 {vmpub}, {LANE}, 2, s40
        s_mov_b32 exec_lo, 0
        v_mov_b32 {vmpub}, {OOB}
        s_mov_b64 exec, -1
        """)
        self.kept = {12: v.get(8, 4)} if g.opt.get("kept", 1) else {}
        for pos, r in self.kept.items():
            a, b = POS[pos]
            for h in range(2): g(f"ds_read_b128 {P4(r + 4 * h)}, {self.vsr} offset:{b * 8192 + a * 2048 + h * 1024}")
        g(f"s_mov_b32 s59, {OOB}")
        self.warm_rings([(self.vvm, S_VM, 0), (vmpub, S_MEM, LOCM)])
        self.pre_project()
        g.flush()
        g.phase("pv")
        g(";@hot\nL_VO_top:")
        g("\n".join(self.step_bases()))
        g(f"""
        {self.mem_slot("s33", 1)}
        s_xor_b32 s49, s33, {LOCM}
        {self.mem_slot("s34", 3)}
        s_cmp_lt_u32 {S_SEG}, {NSEG - 3}
        s_cselect_b32 s34, s34, {OOB}
        s_sleep {g.opt.get('vdelay', 4)}
        """)
        ahead = [f"buffer_load_dword v{self.pt}, {vmpub}, {WS}, s59 offen sc1",
                 f"buffer_store_dword v{self.ones}, {vmpub}, {WS}, s34 offen sc1",
                 f"s_xor_b32 s59, s34, {LOCM}\nbuffer_store_dword v{self.ones}, {vmpub}, {WS}, s59 offen sc1"]
        at = g.opt.get("ah", 99)
        g.stamp(0)
        self.project("VO", {at + k: [(x, None)] for k, x in enumerate(ahead)})
        g.stamp(2)
        for T in range(2): g(f"v_pk_add_f32 {P2(acc + 4 * T)}, {P2(acc + 4 * T)}, {P2(acc + 4 * T + 2)}")
        for T in range(2): g(f"v_cvt_pk_bf16_f32 v{T4 + T}, v{acc + 4 * T}, v{acc + 4 * T + 1}")
        oa = acc + 8
        g(self.same_side("buffer_store_dwordx2", P2(T4), self.vvm, S_VM))
        g(f"""
        s_cmp_ge_u32 {S_SEG}, {NSEG - 1}
        s_cbranch_scc1 L_VO_end
        s_add_u32 s42, {S_O}, s58
        s_xor_b32 s30, s42, {S_LX}
        s_xor_b32 s31, s30, 4096
        s_xor_b32 s32, s42, {4 * CH}
        s_xor_b32 s48, s32, 4096
        s_add_u32 s41, {S_SEG}, 1
        v_mov_b32 {self.vstep}, s41
        s_xor_b32 s35, {S_VM}, 0x84000
        """)
        if at > 15: g("\n".join(ahead))
        g(self.same_side("buffer_store_dwordx2", P2(self.ones), self.vvm, "s35"))
        g.trace_flush(T4 + 4, drain=False)
        for i in range(0, 8, 2): g(f"v_mov_b64 {P2(oa + i)}, 0")
        self.pre_project()
        self.trigger(2048, g.opt.get("own", 1))
        g.stamp(3)
        load = lambda j: f"buffer_load_dwordx4 {P4(ring[j % W])}, {vo[j & 3]}, {WS}, {('s30', 's31', 's32', 's48')[j >> 2]} offen sc1"
        smf = lambda j, T: f"v_smfmac_f32_16x16x64_bf16 {P4(oa + 4 * T)}, {P4(ring[j % W])}, {self.wo(j, T)}, {self.vidx}"
        fa = g.opt.get("fa", "w1")
        self.first_stamp = 4
        lst = lambda k, d: [int(x) for x in str(g.opt.get(k, d)).split("_") if x != "n"]
        zero = lambda: [g(f"v_mov_b64 {P2(oa + i)}, 0") for i in range(0, 8, 2)]
        verdict, cold = self.stream("VOO", ring, load, lambda j: [smf(j, 0), smf(j, 1)], lambda j: [],
                                    bits(g.opt.get("om", "xffff")), 1, zero, {fa: self.send()}, first=g.opt.get("of", 6))
        g.stamp(5)
        sp = lambda k: f"s_memtime s[82:83]" if g.opt.get("sv") == k else ""
        if fa == "end": g("\n".join(self.send()))
        g(f"""
        v_add_f32 v{T4}, v{oa}, v{oa + 2}
        v_add_f32 v{T4 + 1}, v{oa + 4}, v{oa + 6}
        v_add_f32 v{T4 + 2}, v{oa + 1}, v{oa + 3}
        v_add_f32 v{T4 + 3}, v{oa + 5}, v{oa + 7}
        {sp(1)}
        ds_write_b64 {vrw}, {P2(T4)}
        ds_write_b64 {vrw}, {P2(T4 + 2)} offset:2048
        {self.send()[0] if fa == "w1" else ""}
        v_cmp_u_f32 vcc, v{T4}, v{T4 + 2}
        {self.send()[0] if fa == "w2" else ""}
        {verdict}
        {sp(2)}
        """)
        if fa == "red": g("\n".join(self.send()))
        g(f"""
        {sp(3)}
        s_waitcnt lgkmcnt(0)
        {sp(4)}
        s_barrier
        {sp(5)}
        """)
        g(f"ds_read_b128 {P4(T4)}, {vrr}\nds_read_b128 {P4(T4 + 4)}, {vrr2}")
        if fa == "bar": g("\n".join(self.send()))
        g(f"""
        s_waitcnt lgkmcnt(1)
        {sp(6)}
        v_pk_add_f32 {P2(T4)}, {P2(T4)}, {P2(T4 + 2)}
        s_waitcnt lgkmcnt(0)
        {sp(7)}
        v_pk_add_f32 {P2(T4 + 4)}, {P2(T4 + 4)}, {P2(T4 + 6)}
        v_pk_add_f32 {P2(T4)}, {P2(T4)}, {P2(T4 + 4)}
        v_cvt_pk_bf16_f32 v{T4}, v{T4}, v{T4 + 1}
        """)
        g.stamp(6)
        g(f"""
        buffer_store_dword v{T4}, {vmpub}, {WS}, s49 offen
        buffer_store_dword v{T4}, {vmpub}, {WS}, s33 offen sc1
        """)
        if fa == "pub": g("\n".join(self.send()))
        g(f"s_add_u32 {S_SEG}, {S_SEG}, 1")
        g.flush()
        g("s_branch L_VO_top\n;@end\nL_VO_end:")
        self.report(12)
        g("s_branch L_END")
        self.bad_stubs("VO")
        cold()


def emit_wof(g):
    g("L_WOF:")
    g.srd(WW, K_WO, 8 << 20)
    g.src_lane("v1", "v2", 2048, 64, r1=4, r0=1)
    g.tr_lane("v4", "v2", "0")
    g(f"""
    s_and_b32 s43, {S_IDX}, 3
    s_lshl_b32 s43, s43, 2
    s_add_u32 s43, s43, {S_WAVE}
    s_lshr_b32 s44, {S_IDX}, 2
    s_lshl_b32 s40, s43, 19
    s_lshl_b32 s41, s44, 7
    s_add_u32 s40, s40, s41
    v_add_u32 v1, s40, v1
    s_lshl_b32 s41, {S_WAVE}, 15
    v_add_u32 v4, s41, v4
    s_lshl_b32 s40, s44, 19
    s_lshl_b32 s45, s43, 14
    s_add_u32 s40, s40, s45
    v_lshl_add_u32 v3, {LANE}, 4, s40
    """)
    for k in range(1, 4): g(f"v_xor_b32 v{4 + k}, {k << 5}, v4")
    for f in range(4):
        for p in range(4):
            for hi in range(2):
                g(f"""
                s_add_u32 m0, s41, {f * 8192 + p * 2048 + hi * 1024}
                s_mov_b32 s42, {(128 * (f >> 1) + 32 * (f & 1) + 16 * (p >> 1) + 2 * (p & 1) + 8 * hi) * 2048}
                buffer_load_dwordx4 v1, {WW}, s42 offen nt lds
                """)
    for f in range(4):
        g(f"s_waitcnt vmcnt(24)")
        for sl in range(4):
            for p in range(4):
                g(f"ds_read_b64_tr_b16 {P2(8 + 32 * f + 8 * sl + 2 * p)}, v{4 + sl} offset:{f * 8192 + p * 2048}")
        for sl in range(4):
            g(f"s_mov_b32 s42, {WOF + (sl >> 1) * 262144 + f * 4096}\ns_waitcnt lgkmcnt({12 - 4 * sl})")
            for h in range(2):
                g(f"buffer_store_dwordx4 {P4(8 + 32 * f + 8 * sl + 4 * h)}, v3, {WS}, s42 offen offset:{(sl & 1) * 2048 + h * 1024} sc1")
    g.wait_init("v1", "v2")
    g(f"s_barrier\ns_lshl_b32 s40, {S_IDX}, 7\ns_add_u32 s40, s40, {FL_WOF}")
    g.signal("s40", "1", 0)
    g("s_branch L_LN1")
```

```python
import sys
from common import *
import gstage, light, rec
from place import place


def build(opt):
    g = Gen(opt)
    ref = open(f"/code/{NAME}.s.ref").read().split("\n")
    for l in ref:
        if l.startswith("; Override"): break
        g.raw(l)
    g.raw(f"; @launch grid=(256,1,1) block=(256,1,1) lds={LDS_BYTES}")
    g.raw('.amdgcn_target "amdgcn-amd-amdhsa--gfx950"\n.text')
    g.raw(f".globl {NAME}_kernel\n.p2align 8\n.type {NAME}_kernel,@function\n{NAME}_kernel:")
    g(f"""
    s_cmp_ge_u32 s2, 256
    s_cbranch_scc1 L_END
    s_load_dwordx2 s[4:5], s[0:1], {K_WS}
    s_load_dwordx2 s[12:13], s[0:1], {K_DBG}
    v_lshrrev_b32 v1, 6, v0
    v_and_b32 v0, 63, v0
    v_readfirstlane_b32 {S_WAVE}, v1
    s_mov_b32 s6, {WS_SIZE}
    s_mov_b32 s7, 0x20000
    s_mov_b32 s14, 256
    s_mov_b32 s15, 0x20000
    s_mov_b32 {S_TMO}, {BUDGET}
    s_and_b32 s40, s2, 7
    """)
    role, job = layout(opt.get("lay", 2))
    pk = lambda row: hex(sum(v << (8 * o) for o, v in enumerate(row)))
    g(f"s_mov_b32 s42, {pk(role[0])}\ns_mov_b32 s43, {pk(job[0])}")
    for x in range(1, 8):
        g(f"s_cmp_eq_u32 s40, {x}\ns_cselect_b32 s42, {pk(role[x])}, s42\ns_cselect_b32 s43, {pk(job[x])}, s43")
    g(f"""
    s_lshr_b32 s40, s2, 6
    s_lshl_b32 s40, s40, 3
    s_lshr_b32 s42, s42, s40
    s_lshr_b32 s43, s43, s40
    s_bfe_u32 s41, s2, 0x30003
    s_and_b32 s42, s42, 31
    s_lshl_b32 s42, s42, 3
    s_add_u32 s3, s42, s41
    s_bfe_u32 {S_X}, s43, 0x30002
    s_and_b32 s43, s43, 3
    s_lshl_b32 s43, s43, 3
    s_add_u32 {S_R}, s43, s41
    s_waitcnt lgkmcnt(0)
    s_add_u32 s4, s4, {WS_SKIP + 0x1fffff}
    s_addc_u32 s5, s5, 0
    s_and_b32 s4, s4, 0xffe00000
    """)
    g.dbg_time(0, "v1", "v2")
    if opt.get("ipre", 1):
        g(f"""
        s_cmp_lg_u32 {S_WAVE}, 3
        s_cbranch_scc1 L_NOPRE
        s_getpc_b64 s[40:41]
        L_PC:
        s_lshr_b32 s42, s2, 3
        v_lshlrev_b32 v1, 12, {LANE}
        s_lshl_b32 s42, s42, 7
        v_add_u32 v1, s42, v1
        v_min_u32 v1, L_LAST-L_PC, v1
        global_load_dword v255, v1, s[40:41]
        L_NOPRE:
        """)
    g(f"""
    s_cmp_ge_u32 {S_X}, 4
    s_cbranch_scc1 L_TRAIL
    s_lshr_b32 s40, {S_X}, 1
    s_bitcmp1_b32 {S_X}, 0
    s_cbranch_scc0 L_REC
    s_lshl_b32 s40, s40, 5
    s_add_u32 {S_IDX}, s40, {S_R}
    s_branch L_QKV
    L_REC:
    s_lshl_b32 s40, s40, 4
    s_lshr_b32 s41, {S_R}, 1
    s_add_u32 {S_IDX}, s40, s41
    s_bitcmp1_b32 {S_R}, 0
    s_cbranch_scc1 L_VO
    s_branch L_QK
    L_TRAIL:
    s_mov_b32 {S_IDX}, {S_R}
    s_cmp_eq_u32 {S_X}, 6
    s_cbranch_scc1 L_MOD
    s_sub_u32 s40, {S_X}, 4
    s_lshl_b32 s40, s40, 5
    s_add_u32 {S_IDX}, s40, {S_R}
    s_cmp_lg_u32 {S_X}, 7
    s_cbranch_scc1 L_WOF
    """)
    light.emit_init(g)
    light.emit_mod(g)
    light.emit_ln1(g)
    g.tlb_warm("v1", "v2")
    gates = {0: (None, None), 1: (FL_QKV, FL_QKV), 2: (FL_QK, FL_QK), 3: (FL_QK, FL_QKV), 4: (FL_TAB, FL_QKV), 5: (FL_TAB, FL_TAB)}[opt.get("gate", 2)]

    def gate():
        if gates[0]:
            g(f"s_mov_b32 s40, {gates[1]}\ns_cmp_lt_u32 {S_X}, 6\ns_cselect_b32 s40, {gates[0]}, s40\nv_mov_b32 v1, s40")
            g.poll("v1", "0", "v2", sleep=8)
    ml = opt.get("ml", 1)
    if not ml & 2: gate()
    g(f"""
    s_and_b32 s40, {S_X}, 1
    s_add_u32 s40, s40, 1
    s_lshl_b32 s40, s40, 5
    s_add_u32 {S_IDX}, s40, {S_R}
    s_cmp_lt_u32 {S_X}, 6
    s_cbranch_scc{0 if ml & 1 else 1} L_MOD
    L_MOD_back:
    """)
    if ml & 2: gate()
    g(f"""
    L_ROLE:
    s_sub_u32 {S_IDX}, s3, 128
    s_cmp_lt_u32 s3, 160
    s_cbranch_scc1 L_WO
    s_sub_u32 {S_IDX}, s3, 160
    s_cmp_lt_u32 s3, 216
    s_cbranch_scc1 L_F1
    s_sub_u32 {S_IDX}, s3, 216
    s_cmp_lt_u32 s3, 224
    s_cbranch_scc1 L_LN2
    s_sub_u32 {S_IDX}, s3, 224
    s_cmp_lt_u32 s3, 248
    s_cbranch_scc1 L_F2
    s_sub_u32 {S_IDX}, s3, 248
    s_branch L_FIN
    L_FAIL:
    s_mov_b64 exec, -1
    s_lshl_b32 s40, s2, 8
    s_add_u32 s40, s40, {S_SEG}
    s_add_u32 s40, s40, 0x70000000
    v_mov_b32 v1, {15 * 4}
    v_mov_b32 v2, s40
    buffer_store_dword v2, v1, {DBG}, 0 offen
    L_END:
    s_endpgm
    """)
    light.emit_ln2(g)
    light.emit_fin(g)
    for cls in (gstage.QKV, gstage.WO, gstage.F1, gstage.F2):
        cls(g).emit()
    rec.emit_wof(g)
    rec.QK(g).emit()
    rec.VO(g).emit()
    g("L_LAST:\ns_endpgm")
    g.raw(f""".section .rodata,"a"
.p2align 6
.amdhsa_kernel {NAME}_kernel
  .amdhsa_next_free_vgpr 512
  .amdhsa_next_free_sgpr 102
  .amdhsa_accum_offset 256
  .amdhsa_group_segment_fixed_size 0
  .amdhsa_kernarg_size 128
  .amdhsa_user_sgpr_count 2
  .amdhsa_user_sgpr_kernarg_segment_ptr 1
  .amdhsa_system_sgpr_workgroup_id_x 1
  .amdhsa_float_denorm_mode_32 3
.end_amdhsa_kernel""")
    return place(g.text(), opt.get('lim', 24)) if opt.get('place', 1) else g.text()


if __name__ == "__main__":
    opt = {}
    out = f"/code/{NAME}.s"
    for a in sys.argv[1:]:
        k, _, v = a.partition("=")
        if k == "out": out = v
        else: opt[k] = int(v) if v.lstrip("-").isdigit() else v
    open(out, "w").write(build(opt))
    print("wrote", out)
```
